```python
import torch

def _softmax(x, axis=-1):
    return torch.softmax(x, dim=axis)
def _gelu(x):
    return torch.nn.functional.gelu(x, approximate="tanh")
def _silu(x):
    return torch.nn.functional.silu(x)
def _sigmoid(x):
    return torch.sigmoid(x)
def _layernorm(x, axis=-1, eps=1e-5):
    m = x.mean(dim=axis, keepdim=True)
    v = x.var(dim=axis, keepdim=True, unbiased=False)
    return (x - m) / torch.sqrt(v + eps)
def _scatter_add(tgt, idx, src, axis=0):
    return tgt.clone().index_add_(axis, idx, src)
def _segment_sum(src, seg, n):
    out = torch.zeros((n,) + src.shape[1:], dtype=src.dtype)
    return out.index_add_(0, seg, src)
def _pad(x, pw):
    flat = tuple(v for pair in reversed(pw) for v in pair)
    return torch.nn.functional.pad(x, flat)

kernel_name = 'gated_mix__ssm_conv_s5__dense_activation_gelu__prompt'

def setup_inputs():

    _w = (lambda a: (lambda t: t.to(torch.bfloat16) if t.is_floating_point() else t)(torch.as_tensor(a)))
    def _A_setup():
        B, S, D = 1, 2048, 512
        P = D
        Lambda_re = -0.5 * (lambda _x: torch.exp(torch.as_tensor(_x)))((lambda *s: torch.randn(*s, dtype=torch.bfloat16) * 0.2)(P))
        Lambda_im = (lambda *s: torch.randn(*s, dtype=torch.bfloat16) * 0.8)(P) * 1.0
        B_re = (lambda *s: torch.randn(*s, dtype=torch.bfloat16) * 0.2)(P, D) * (D ** -0.5)
        B_im = (lambda *s: torch.randn(*s, dtype=torch.bfloat16) * 0.2)(P, D) * (D ** -0.5)
        C_re = (lambda *s: torch.randn(*s, dtype=torch.bfloat16) * 0.2)(D, P) * (P ** -0.5)
        C_im = (lambda *s: torch.randn(*s, dtype=torch.bfloat16) * 0.2)(D, P) * (P ** -0.5)
        log_dt = (lambda *s: torch.randn(*s, dtype=torch.bfloat16) * 0.2)(P) * 0.3 - 2.0
        Dskip = (lambda *s: torch.randn(*s, dtype=torch.bfloat16) * 0.05)(D)
        return {
            "x": _w((lambda *s: torch.randn(*s, dtype=torch.bfloat16) * 0.05)(B, S, D)),
            "Lambda_re": _w(Lambda_re),
            "Lambda_im": _w(Lambda_im),
            "B_re": _w(B_re),
            "B_im": _w(B_im),
            "C_re": _w(C_re),
            "C_im": _w(C_im),
            "log_dt": _w(log_dt),
            "Dskip": _w(Dskip),
        }
    _A_in = _A_setup()

    def _B_setup():
        B, S, D, F = 1, 2048, 512, 1792
        return {
            "x": _w((lambda *s: torch.randn(*s, dtype=torch.bfloat16) * 0.05)(B, S, D)),
            "w1": _w((lambda *s: torch.randn(*s, dtype=torch.bfloat16) * 3.2)(D, F) * (D ** -0.5)),
            "b1": _w((lambda *s: torch.randn(*s, dtype=torch.bfloat16) * 3.2)(F) * 0.01),
            "w2": _w((lambda *s: torch.randn(*s, dtype=torch.bfloat16) * 0.1)(F, D) * (F ** -0.5)),
            "b2": _w((lambda *s: torch.randn(*s, dtype=torch.bfloat16) * 0.2)(D) * 0.01),
        }
    _B_in = _B_setup()

    return {
        "A_x": _A_in["x"],
        "A_Lambda_re": _A_in["Lambda_re"],
        "A_Lambda_im": _A_in["Lambda_im"],
        "A_B_re": _A_in["B_re"],
        "A_B_im": _A_in["B_im"],
        "A_C_re": _A_in["C_re"],
        "A_C_im": _A_in["C_im"],
        "A_log_dt": _A_in["log_dt"],
        "A_Dskip": _A_in["Dskip"],
        "B_x": _B_in["x"],
        "B_w1": _B_in["w1"],
        "B_b1": _B_in["b1"],
        "B_w2": _B_in["w2"],
        "B_b2": _B_in["b2"],
        "gate_w": _w((lambda *s: torch.randn(*s, dtype=torch.bfloat16) * 0.05)(512) * 16.0),
    }

def reference(A_x, A_Lambda_re, A_Lambda_im, A_B_re, A_B_im, A_C_re, A_C_im, A_log_dt, A_Dskip, B_x, B_w1, B_b1, B_w2, B_b2, gate_w):
    def _A_ref(x, Lambda_re, Lambda_im, B_re, B_im, C_re, C_im, log_dt, Dskip):
        Bsz, L, H = x.shape
        Lam = Lambda_re + 1j * Lambda_im
        Bmat = B_re + 1j * B_im
        Cmat = C_re + 1j * C_im
        dt = torch.exp(log_dt)
        Lam_bar = torch.exp(dt * Lam)
        B_bar = ((Lam_bar - 1.0) / Lam)[:, None] * Bmat
        Bu = torch.einsum("bld,pd->blp", x + 0j, B_bar)
        h = torch.zeros_like(Bu[:, 0, :])
        hs = []
        for t in range(L):
            h = Lam_bar[None, :] * h + Bu[:, t, :]
            hs.append(h)
        hseq = torch.stack(hs, 1)
        y = 2.0 * torch.einsum("blp,dp->bld", hseq, Cmat).real + x * Dskip[None, None, :]
        return y

    def _B_ref(x, w1, b1, w2, b2):
        h = torch.einsum("bsd,df->bsf", x, w1) + b1
        h = _gelu(h)
        return torch.einsum("bsf,fd->bsd", h, w2) + b2

    x = A_x
    g = _sigmoid((x * gate_w).sum(-1, keepdims=True))
    a = _A_ref(x, A_Lambda_re, A_Lambda_im, A_B_re, A_B_im, A_C_re, A_C_im, A_log_dt, A_Dskip)
    b = _B_ref(x, B_w1, B_b1, B_w2, B_b2)
    return g * a + (1 - g) * b
```

```python
def gen_k1(G):
    e, c, i, srd = G['e'], G['c'], G['i'], G['srd']
    WS_HG, WS_H, WS_FIN, WS_G = G['WS_HG'], G['WS_H'], G['WS_FIN'], G['WS_G']
    G['kstart']("k1_kernel")
    i("s_cmp_ge_u32 s2, 256"); i("s_cbranch_scc1 K1_END")
    i("s_load_dwordx4 s[24:27], s[0:1], 0")
    i("s_load_dwordx4 s[28:31], s[0:1], 16")
    i("s_load_dwordx2 s[32:33], s[0:1], 32")
    i("s_load_dwordx2 s[34:35], s[0:1], 56")
    i("s_load_dwordx4 s[36:39], s[0:1], 80")
    i("s_load_dwordx2 s[40:41], s[0:1], 112")
    i("s_load_dwordx2 s[42:43], s[0:1], 128"); i("s_load_dwordx2 s[44:45], s[0:1], 136")
    i("s_lshr_b32 s3, s2, 4"); i("s_and_b32 s4, s2, 15")
    i("v_lshrrev_b32 v1, 6, v0"); i("s_nop 0"); i("v_readfirstlane_b32 s5, v1")
    i("v_and_b32 v2, 63, v0")
    i("v_and_b32 v3, 15, v0")
    i("v_bfe_u32 v4, v0, 4, 2")
    i("s_lshl_b32 s6, s3, 17")
    i("s_waitcnt lgkmcnt(0)")
    srd(8, 24, 2048*1024); srd(20, 44, 16<<20)
    i("v_lshrrev_b32 v8, 3, v0"); i("v_and_b32 v9, 7, v0")
    i("v_lshlrev_b32 v5, 10, v8"); i("v_lshl_add_u32 v5, v9, 4, v5"); i("v_add_u32 v5, s6, v5")
    i("v_add_u32 v6, 0x10000, v5")
    i("v_mul_u32_u24 v7, 144, v8"); i("v_lshl_add_u32 v7, v9, 4, v7")
    i("s_cmp_lt_u32 s4, 8"); i("s_cbranch_scc1 K1_SSM")

    i("s_sub_u32 s7, s4, 8"); i("s_mul_i32 s7, s7, 448")
    srd(12, 36, 512*3584)
    i("s_mov_b32 s48, 2341")
    for q in range(4):
        i(f"v_add_u32 v10, {512*q}, v0")
        if q == 3:
            i("v_cmp_le_u32 vcc, 1792, v10"); i("v_subrev_u32 v11, 256, v10"); i("s_nop 1"); i("v_cndmask_b32 v10, v10, v11, vcc")
        i("v_mul_lo_u32 v11, v10, s48"); i("v_lshrrev_b32 v11, 16, v11")
        i("v_mul_u32_u24 v12, 28, v11"); i("v_sub_u32 v12, v10, v12")
        i("v_mul_u32_u24 v13, 3584, v11"); i(f"v_lshl_add_u32 v{20+q}, v12, 4, v13"); i(f"v_add_u32 v{20+q}, s7, v{20+q}")
        i("v_bfe_u32 v13, v11, 3, 1"); i("v_lshlrev_b32 v13, 1, v13"); i("v_xor_b32 v12, v12, v13")
        i("v_mul_u32_u24 v13, 448, v11"); i(f"v_lshl_add_u32 v{24+q}, v12, 4, v13"); i(f"v_add_u32 v{24+q}, 18432, v{24+q}")
    i("s_lshr_b32 s49, s5, 1"); i("s_and_b32 s50, s5, 1")
    i("s_lshl_b32 s51, s49, 5")
    i("v_add_u32 v10, s51, v3"); i("v_mul_u32_u24 v28, 144, v10"); i("v_lshl_add_u32 v28, v4, 4, v28")
    i("v_add_u32 v29, 47104, v28")
    i("v_lshrrev_b32 v10, 2, v3"); i("v_lshl_add_u32 v10, v4, 3, v10"); i("v_mul_u32_u24 v11, 448, v10")
    i("v_and_b32 v12, 3, v3"); i("v_lshl_add_u32 v11, v12, 3, v11")
    i("s_mul_i32 s51, s50, 224"); i("s_add_u32 s51, s51, 18432"); i("v_add_u32 v11, s51, v11")
    i("v_and_b32 v12, 1, v4"); i("v_lshlrev_b32 v12, 5, v12")
    i("s_cmp_eq_u32 s50, 0"); i("s_cselect_b32 s51, 1, -1")
    i("v_mul_lo_u32 v12, v12, s51")
    i("v_add_u32 v30, v11, v12"); i("v_sub_u32 v31, v11, v12")
    i("v_add_u32 v32, 47104, v30"); i("v_add_u32 v33, 47104, v31")
    for a in range(56): i(f"v_accvgpr_write_b32 a{a}, 0")
    SA = [40, 64]
    def loads(ch, S):
        i(f"s_mov_b32 s46, {ch*128}"); i(f"s_mov_b32 s47, {ch*229376}")
        i(f"buffer_load_dwordx4 v[{S}:{S+3}], v5, s[8:11], s46 offen")
        i(f"buffer_load_dwordx4 v[{S+4}:{S+7}], v6, s[8:11], s46 offen")
        for q in range(4): i(f"buffer_load_dwordx4 v[{S+8+4*q}:{S+11+4*q}], v{20+q}, s[12:15], s47 offen")
    def writes(S, b):
        o = 47104*b
        i(f"ds_write_b128 v7, v[{S}:{S+3}] offset:{o}")
        i(f"ds_write_b128 v7, v[{S+4}:{S+7}] offset:{o+9216}")
        for q in range(4): i(f"ds_write_b128 v{24+q}, v[{S+8+4*q}:{S+11+4*q}] offset:{o}")
    loads(0, SA[0]); loads(1, SA[1])
    i("s_waitcnt vmcnt(6)"); writes(SA[0], 0); i("s_waitcnt lgkmcnt(0)"); loads(2, SA[0]); i("s_barrier")
    XF, WF = 88, 96
    for ch in range(8):
        b = ch & 1
        for ks in range(2):
            xa = 29 if b else 28
            for tt in range(2): i(f"ds_read_b128 v[{XF+4*tt}:{XF+4*tt+3}], v{xa} offset:{tt*16*144+ks*64}")
            for tn in range(7):
                wa = (32 if b else 30) + (tn & 1)
                for hh in range(2):
                    i(f"ds_read_b64_tr_b16 v[{WF+4*tn+2*hh}:{WF+4*tn+2*hh+1}], v{wa} offset:{(ks*32+hh*4)*448+32*tn}")
            if ks == 0 and ch < 7:
                i("s_waitcnt vmcnt(6)" if ch < 6 else "s_waitcnt vmcnt(0)")
                writes(SA[(ch+1)&1], (ch+1)&1)
            i("s_waitcnt lgkmcnt(0)")
            if ks == 0 and ch < 5: loads(ch+3, SA[(ch+1)&1])
            for tn in range(7):
                for tt in range(2):
                    A = (tn*2+tt)*4
                    i(f"v_mfma_f32_16x16x32_bf16 a[{A}:{A+3}], v[{WF+4*tn}:{WF+4*tn+3}], v[{XF+4*tt}:{XF+4*tt+3}], a[{A}:{A+3}]")
        i("s_barrier")
    srd(12, 38, 3584)
    i("v_lshlrev_b32 v10, 3, v4"); i("s_mul_i32 s51, s50, 224"); i("s_add_u32 s51, s51, s7"); i("v_add_u32 v10, s51, v10")
    for tn in range(7): i(f"buffer_load_dwordx2 v[{40+2*tn}:{41+2*tn}], v10, s[12:15], 0 offen offset:{32*tn}")
    i("s_lshl_b32 s52, s3, 7"); i("s_lshl_b32 s53, s49, 5"); i("s_add_u32 s52, s52, s53")
    i("v_add_u32 v11, s52, v3"); i("v_mul_u32_u24 v11, 3584, v11"); i("v_add_u32 v11, v11, v10")
    i("v_add_u32 v12, 57344, v11")
    i("s_mov_b32 s54, 0x3f4c422a"); i("s_mov_b32 s55, 0x3d122279"); i("s_mov_b32 s56, 0xc038aa3b")
    i("s_waitcnt vmcnt(0)"); i("s_nop 7")
    for tn in range(7):
        for h in range(2):
            i(f"v_lshlrev_b32 v{60+2*h}, 16, v{40+2*tn+h}"); i(f"v_and_b32 v{61+2*h}, 0xffff0000, v{40+2*tn+h}")
        for tt in range(2):
            A = (tn*2+tt)*4
            for r in range(4): i(f"v_accvgpr_read_b32 v{64+r}, a{A+r}")
            for h in range(2):
                a0, a1 = 64+2*h, 65+2*h
                i(f"v_cvt_pk_bf16_f32 v70, v{a0}, v{a1}")
                i(f"v_lshlrev_b32 v{a0}, 16, v70"); i(f"v_and_b32 v{a1}, 0xffff0000, v70")
                i(f"v_add_f32 v{a0}, v{a0}, v{60+2*h}"); i(f"v_add_f32 v{a1}, v{a1}, v{61+2*h}")
                i(f"v_cvt_pk_bf16_f32 v70, v{a0}, v{a1}")
                i(f"v_lshlrev_b32 v{a0}, 16, v70"); i(f"v_and_b32 v{a1}, 0xffff0000, v70")
                for a in (a0, a1):
                    t = 72 + (a - 64)
                    i(f"v_mul_f32 v{t}, v{a}, v{a}"); i(f"v_mov_b32 v76, s54"); i(f"v_fma_f32 v{t}, v{t}, s55, v76")
                    i(f"v_mul_f32 v{t}, v{t}, v{a}"); i(f"v_mul_f32 v{t}, s56, v{t}"); i(f"v_exp_f32 v{t}, v{t}")
                    i("s_nop 0"); i(f"v_add_f32 v{t}, 1.0, v{t}"); i(f"v_rcp_f32 v{t}, v{t}"); i("s_nop 0"); i(f"v_mul_f32 v{t}, v{t}, v{a}")
                i(f"v_cvt_pk_bf16_f32 v{78+h}, v{72+2*h}, v{73+2*h}")
            i(f"buffer_store_dwordx2 v[78:79], v{12 if tt else 11}, s[20:23], 0 offen offset:{32*tn}")
            i("s_nop 1")
    i("s_branch K1_END")

    e("K1_SSM:")
    srd(12, 30, 512*1024); srd(16, 32, 512*1024)
    srd(48, 40, 1024)
    i("v_lshrrev_b32 v10, 5, v0"); i("s_lshl_b32 s7, s4, 4"); i("v_add_u32 v10, s7, v10")
    i("v_lshlrev_b32 v11, 10, v10"); i("v_add_u32 v11, s6, v11"); i("v_and_b32 v12, 31, v0"); i("v_lshl_add_u32 v11, v12, 5, v11")
    i("v_lshlrev_b32 v13, 5, v12")
    i("buffer_load_dwordx4 v[40:43], v11, s[8:11], 0 offen"); i("buffer_load_dwordx4 v[44:47], v11, s[8:11], 0 offen offset:16")
    i("buffer_load_dwordx4 v[48:51], v13, s[48:51], 0 offen"); i("buffer_load_dwordx4 v[52:55], v13, s[48:51], 0 offen offset:16")
    i("v_mov_b32 v14, 0"); i("s_waitcnt vmcnt(0)")
    for r in range(8):
        i(f"v_lshlrev_b32 v60, 16, v{40+r}"); i(f"v_and_b32 v61, 0xffff0000, v{40+r}")
        i(f"v_lshlrev_b32 v62, 16, v{48+r}"); i(f"v_and_b32 v63, 0xffff0000, v{48+r}")
        i("v_mul_f32 v60, v60, v62"); i("v_mul_f32 v61, v61, v63"); i("v_cvt_pk_bf16_f32 v60, v60, v61")
        i("v_lshlrev_b32 v61, 16, v60"); i("v_and_b32 v60, 0xffff0000, v60"); i("v_add_f32 v14, v14, v61"); i("v_add_f32 v14, v14, v60")
    for m in (0x041F, 0x081F, 0x101F, 0x201F, 0x401F):
        i(f"ds_swizzle_b32 v15, v14 offset:{m}"); i("s_waitcnt lgkmcnt(0)"); i("v_add_f32 v14, v14, v15")
    i("v_cvt_pk_bf16_f32 v14, v14, v14"); i("v_lshlrev_b32 v14, 16, v14")
    i("v_mul_f32 v14, 0xbfb8aa3b, v14"); i("v_exp_f32 v14, v14"); i("s_nop 0"); i("v_add_f32 v14, 1.0, v14"); i("v_rcp_f32 v14, v14"); i("s_nop 0")
    i("v_cvt_pk_bf16_f32 v14, v14, v14"); i("v_lshlrev_b32 v14, 16, v14")
    i("s_lshl_b32 s52, s3, 7"); i("v_add_u32 v10, s52, v10"); i("v_lshlrev_b32 v10, 2, v10"); i(f"v_add_u32 v10, {WS_G}, v10")
    i("buffer_store_dword v14, v10, s[20:23], 0 offen")
    i("s_lshl_b32 s7, s4, 16")
    i("v_lshlrev_b32 v20, 10, v8"); i("v_lshl_add_u32 v20, v9, 4, v20"); i("v_add_u32 v20, s7, v20")
    i("v_add_u32 v24, 18432, v7")
    i("s_lshr_b32 s49, s5, 1"); i("s_and_b32 s50, s5, 1"); i("s_lshl_b32 s51, s49, 5")
    i("v_add_u32 v10, s51, v3"); i("v_mul_u32_u24 v28, 144, v10"); i("v_lshl_add_u32 v28, v4, 4, v28"); i("v_add_u32 v29, 47104, v28")
    i("s_lshl_b32 s51, s50, 6"); i("v_add_u32 v10, s51, v3"); i("v_mul_u32_u24 v30, 144, v10"); i("v_lshl_add_u32 v30, v4, 4, v30")
    i("v_add_u32 v30, 18432, v30"); i("v_add_u32 v31, 47104, v30")
    for a in range(32): i(f"v_accvgpr_write_b32 a{a}, 0")
    def loads2(ch, S):
        i(f"s_mov_b32 s46, {ch*128}")
        i(f"buffer_load_dwordx4 v[{S}:{S+3}], v5, s[8:11], s46 offen")
        i(f"buffer_load_dwordx4 v[{S+4}:{S+7}], v6, s[8:11], s46 offen")
        i(f"buffer_load_dwordx4 v[{S+8}:{S+11}], v20, s[12:15], s46 offen")
        i(f"buffer_load_dwordx4 v[{S+12}:{S+15}], v20, s[16:19], s46 offen")
    def writes2(S, b):
        o = 47104*b
        i(f"ds_write_b128 v7, v[{S}:{S+3}] offset:{o}"); i(f"ds_write_b128 v7, v[{S+4}:{S+7}] offset:{o+9216}")
        i(f"ds_write_b128 v24, v[{S+8}:{S+11}] offset:{o}"); i(f"ds_write_b128 v24, v[{S+12}:{S+15}] offset:{o+9216}")
    loads2(0, SA[0]); loads2(1, SA[1])
    i("s_waitcnt vmcnt(4)"); writes2(SA[0], 0); i("s_waitcnt lgkmcnt(0)"); loads2(2, SA[0]); i("s_barrier")
    for ch in range(8):
        b = ch & 1
        for ks in range(2):
            for tt in range(2): i(f"ds_read_b128 v[{XF+4*tt}:{XF+4*tt+3}], v{29 if b else 28} offset:{tt*16*144+ks*64}")
            for tn in range(4): i(f"ds_read_b128 v[{WF+4*tn}:{WF+4*tn+3}], v{31 if b else 30} offset:{tn*16*144+ks*64}")
            if ks == 0 and ch < 7:
                i("s_waitcnt vmcnt(4)" if ch < 6 else "s_waitcnt vmcnt(0)")
                writes2(SA[(ch+1)&1], (ch+1)&1)
            i("s_waitcnt lgkmcnt(0)")
            if ks == 0 and ch < 5: loads2(ch+3, SA[(ch+1)&1])
            for tn in range(4):
                for tt in range(2):
                    A = (tn*2+tt)*4
                    i(f"v_mfma_f32_16x16x32_bf16 a[{A}:{A+3}], v[{XF+4*tt}:{XF+4*tt+3}], v[{WF+4*tn}:{WF+4*tn+3}], a[{A}:{A+3}]")
        i("s_barrier")
    i("s_lshl_b32 s51, s49, 5"); i("v_lshl_add_u32 v10, v4, 2, s51"); i("v_mul_u32_u24 v10, 528, v10")
    i("s_lshl_b32 s51, s50, 8"); i("v_lshl_add_u32 v11, v3, 2, s51"); i("v_add_u32 v10, v10, v11")
    i("s_nop 7")
    for tn in range(4):
        for tt in range(2):
            for r in range(4):
                i(f"v_accvgpr_read_b32 v12, a{(tn*2+tt)*4+r}")
                i(f"ds_write_b32 v10, v12 offset:{(16*tt+r)*528+64*tn}")
    srd(48, 26, 1024); srd(52, 28, 1024); srd(56, 34, 1024)
    i("v_and_b32 v12, 31, v0"); i("v_lshrrev_b32 v13, 5, v0")
    i("s_lshl_b32 s7, s4, 7"); i("v_lshl_add_u32 v14, v12, 2, s7")
    i("buffer_load_dword v40, v14, s[48:51], 0 offen"); i("buffer_load_dword v41, v14, s[52:55], 0 offen"); i("buffer_load_dword v42, v14, s[56:59], 0 offen")
    i("s_waitcnt vmcnt(0)")
    for u in range(2):
        ex = (lambda d, s: i(f"v_lshlrev_b32 v{d}, 16, v{s}")) if u == 0 else (lambda d, s: i(f"v_and_b32 v{d}, 0xffff0000, v{s}"))
        ex(60, 40); ex(61, 41); ex(62, 42)
        i("v_mul_f32 v62, 0x3fb8aa3b, v62"); i("v_exp_f32 v62, v62"); i("s_nop 0"); i("v_cvt_pk_bf16_f32 v62, v62, v62"); i("v_lshlrev_b32 v62, 16, v62")
        i("v_mul_f32 v63, v62, v60"); i("v_mul_f32 v64, v62, v61")
        i("v_mul_f32 v63, 0x3fb8aa3b, v63"); i("v_exp_f32 v63, v63"); i("v_mul_f32 v64, 0.15915494, v64"); i("v_cos_f32 v65, v64"); i("v_sin_f32 v66, v64"); i("s_nop 0")
        i(f"v_mul_f32 v{44+u}, v63, v65"); i(f"v_mul_f32 v{46+u}, v63, v66")
        i(f"v_subrev_f32 v65, 1.0, v{44+u}")
        i("v_mul_f32 v66, v60, v60"); i("v_fma_f32 v66, v61, v61, v66"); i("v_rcp_f32 v66, v66")
        i(f"v_mul_f32 v67, v65, v60"); i(f"v_fma_f32 v67, v{46+u}, v61, v67")
        i(f"v_mul_f32 v68, v{46+u}, v60"); i(f"v_fma_f32 v68, -v65, v61, v68")
        i(f"v_mul_f32 v{48+u}, v67, v66"); i(f"v_mul_f32 v{50+u}, v68, v66")
    i("s_waitcnt lgkmcnt(0)"); i("s_barrier")
    i("v_mul_u32_u24 v15, 4224, v13"); i("v_lshl_add_u32 v15, v12, 3, v15")
    for k in range(8):
        i(f"ds_read_b64 v[{100+4*k}:{101+4*k}], v15 offset:{k*528}"); i(f"ds_read_b64 v[{102+4*k}:{103+4*k}], v15 offset:{k*528+256}")
    i("s_waitcnt lgkmcnt(0)")
    def cmad(dr, di, ar, ai, br, bi, cr, ci):
        i(f"v_fma_f32 v70, v{ar}, v{br}, v{cr}"); i(f"v_fma_f32 v71, v{ar}, v{bi}, v{ci}")
        i(f"v_fma_f32 v69, -v{ai}, v{bi}, v70"); i(f"v_fma_f32 v{di}, v{ai}, v{br}, v71"); i(f"v_mov_b32 v{dr}, v69")
    for k in range(1, 8):
        for u in range(2):
            cmad(100+4*k+u, 102+4*k+u, 44+u, 46+u, 96+4*k+u, 98+4*k+u, 100+4*k+u, 102+4*k+u)
    for u in range(2):
        i(f"v_mov_b32 v{52+u}, v{44+u}"); i(f"v_mov_b32 v{54+u}, v{46+u}")
        for _ in range(3):
            i(f"v_mul_f32 v70, v{52+u}, v{52+u}"); i(f"v_mul_f32 v71, v{52+u}, v{54+u}")
            i(f"v_fma_f32 v{52+u}, -v{54+u}, v{54+u}, v70"); i(f"v_add_f32 v{54+u}, v71, v71")
    SF, CS, PW, CIN = 0, 8192, 16384, 24576
    i("v_lshlrev_b32 v16, 4, v0"); i("v_add_u32 v16, 67584, v16"); i(f"ds_write_b128 v16, v[128:131] offset:{SF}")
    i("s_waitcnt lgkmcnt(0)"); i("s_barrier")
    i("s_cmp_lg_u32 s5, 0"); i("s_cbranch_scc1 K1_WAITC")
    i("v_lshlrev_b32 v17, 4, v12"); i("v_add_u32 v97, 67584, v17")
    for r in range(4): i(f"v_mov_b32 v{72+r}, 0")
    i("v_mov_b32 v76, 1.0"); i("v_mov_b32 v77, 1.0"); i("v_mov_b32 v78, 0"); i("v_mov_b32 v79, 0")
    for s in range(16):
        i(f"ds_read_b128 v[80:83], v97 offset:{SF+512*s}")
        i(f"ds_write_b128 v97, v[72:75] offset:{CS+512*s}"); i(f"ds_write_b128 v97, v[76:79] offset:{PW+512*s}")
        i("s_waitcnt lgkmcnt(0)")
        for u in range(2):
            cmad(72+u, 74+u, 52+u, 54+u, 72+u, 74+u, 80+u, 82+u)
            i(f"v_mul_f32 v84, v{76+u}, v{52+u}"); i(f"v_mul_f32 v85, v{76+u}, v{54+u}")
            i(f"v_fma_f32 v{76+u}, -v{78+u}, v{54+u}, v84"); i(f"v_fma_f32 v{78+u}, v{78+u}, v{52+u}, v85")
    i("s_lshl_b32 s7, s3, 3"); i("s_add_u32 s7, s7, s4"); i("s_lshl_b32 s7, s7, 9"); i(f"s_add_u32 s7, s7, {WS_FIN}")
    i("v_add_u32 v18, s7, v17")
    i("buffer_store_dwordx4 v[72:75], v18, s[20:23], 0 offen sc1")
    i("s_waitcnt vmcnt(0)")
    srd(48, 42, 256)
    i("s_lshl_b32 s7, 1, s3"); i("v_mov_b32 v19, s7"); i("s_lshl_b32 s52, s4, 2"); i("v_mov_b32 v86, s52")
    i("v_cmp_eq_u32 vcc, 0, v2"); i("s_and_saveexec_b64 s[60:61], vcc")
    i("buffer_atomic_or v19, v86, s[48:51], 0 offen sc1")
    i("s_mov_b64 exec, s[60:61]")
    i("s_sub_u32 s53, s7, 1")
    e("K1_POLL:")
    i("buffer_load_dword v87, v86, s[48:51], 0 offen sc1"); i("s_waitcnt vmcnt(0)")
    i("v_readfirstlane_b32 s54, v87"); i("s_and_b32 s54, s54, s53"); i("s_cmp_eq_u32 s54, s53"); i("s_cbranch_scc1 K1_GOT")
    i("s_sleep 2"); i("s_branch K1_POLL")
    e("K1_GOT:")
    for r in range(4): i(f"v_mov_b32 v{72+r}, 0")
    i("s_lshl_b32 s7, s4, 9"); i(f"s_add_u32 s7, s7, {WS_FIN}"); i("v_add_u32 v18, s7, v17")
    i("s_mov_b32 s55, 0")
    e("K1_HORN:")
    i("s_cmp_ge_u32 s55, s3"); i("s_cbranch_scc1 K1_HDONE")
    i("buffer_load_dwordx4 v[80:83], v18, s[20:23], 0 offen sc1"); i("v_add_u32 v18, 4096, v18"); i("s_waitcnt vmcnt(0)")
    for u in range(2): cmad(72+u, 74+u, 76+u, 78+u, 72+u, 74+u, 80+u, 82+u)
    i("s_add_u32 s55, s55, 1"); i("s_branch K1_HORN")
    e("K1_HDONE:")
    i(f"ds_write_b128 v97, v[72:75] offset:{CIN}"); i("s_waitcnt lgkmcnt(0)")
    e("K1_WAITC:")
    i("s_barrier")
    i("v_lshlrev_b32 v17, 4, v12"); i("v_add_u32 v97, 67584, v17")
    i(f"ds_read_b128 v[72:75], v16 offset:{CS}"); i(f"ds_read_b128 v[76:79], v16 offset:{PW}"); i(f"ds_read_b128 v[80:83], v97 offset:{CIN}")
    i("s_waitcnt lgkmcnt(0)")
    for u in range(2): cmad(72+u, 74+u, 76+u, 78+u, 80+u, 82+u, 72+u, 74+u)
    i("s_lshl_b32 s7, s3, 7"); i("v_lshl_add_u32 v18, v13, 3, s7"); i("v_lshlrev_b32 v18, 11, v18")
    i("s_lshl_b32 s7, s4, 7"); i(f"s_add_u32 s7, s7, {WS_H}"); i("v_lshl_add_u32 v19, v12, 2, s7"); i("v_add_u32 v18, v18, v19")
    i("v_add_u32 v19, 4096, v18")
    for k in range(8):
        for u in range(2):
            i(f"v_mul_f32 v84, v{44+u}, v{72+u}"); i(f"v_mul_f32 v85, v{44+u}, v{74+u}")
            i(f"v_fma_f32 v84, -v{46+u}, v{74+u}, v84"); i(f"v_fma_f32 v{74+u}, v{46+u}, v{72+u}, v85"); i(f"v_mov_b32 v{72+u}, v84")
            i(f"v_add_f32 v86, v{100+4*k+u}, v{72+u}"); i(f"v_add_f32 v87, v{102+4*k+u}, v{74+u}")
            i(f"v_mul_f32 v88, v{48+u}, v86"); i(f"v_fma_f32 v{90+u}, -v{50+u}, v87, v88")
            i(f"v_mul_f32 v88, v{48+u}, v87"); i(f"v_fma_f32 v88, v{50+u}, v86, v88"); i(f"v_sub_f32 v{92+u}, 0, v88")
        i("v_cvt_pk_bf16_f32 v94, v90, v91"); i("v_cvt_pk_bf16_f32 v95, v92, v93")
        i(f"v_add_u32 v89, {k*2048}, v18")
        i("buffer_store_dword v94, v89, s[20:23], 0 offen"); i("buffer_store_dword v95, v89, s[20:23], 0 offen offset:1024")
    e("K1_END:")
    i("s_endpgm")
    G['kdesc']("k1_kernel", 192, 136)
```

```python
def gen_k2(G):
    e, c, i, srd = G['e'], G['c'], G['i'], G['srd']
    WS_HG, WS_H, WS_FIN, WS_G = G['WS_HG'], G['WS_H'], G['WS_FIN'], G['WS_G']
    G['kstart']("k2_kernel")
    i("s_cmp_ge_u32 s2, 256"); i("s_cbranch_scc1 K2_END")
    i("s_load_dwordx2 s[24:25], s[0:1], 0")
    i("s_load_dwordx4 s[28:31], s[0:1], 40")
    i("s_load_dwordx2 s[32:33], s[0:1], 64")
    i("s_load_dwordx4 s[36:39], s[0:1], 96")
    i("s_load_dwordx2 s[40:41], s[0:1], 120")
    i("s_load_dwordx2 s[44:45], s[0:1], 136")
    i("s_lshr_b32 s3, s2, 3"); i("s_and_b32 s4, s2, 7")
    i("v_lshrrev_b32 v1, 6, v0"); i("s_nop 0"); i("v_readfirstlane_b32 s5, v1")
    i("v_and_b32 v2, 63, v0"); i("v_and_b32 v3, 31, v0"); i("v_bfe_u32 v4, v0, 5, 1")
    i("s_waitcnt lgkmcnt(0)")
    srd(20, 44, 16<<20); srd(12, 36, 1792*1024)
    i("s_cmp_lt_u32 s5, 4"); i("s_cselect_b32 s16, s28, s30"); i("s_cselect_b32 s17, s29, s31"); i("s_mov_b32 s18, 524288"); i("s_mov_b32 s19, 0x00020000")
    for a in range(128): i(f"v_accvgpr_write_b32 a{a}, 0")
    i("s_lshl_b32 s6, s3, 6"); i("v_add_u32 v5, s6, v3")
    i("v_lshlrev_b32 v6, 11, v5"); i("v_lshl_add_u32 v6, v4, 4, v6"); i("s_lshl_b32 s7, s5, 8"); i(f"s_add_u32 s7, s7, {WS_H}"); i("v_add_u32 v6, s7, v6")
    i("v_add_u32 v7, 65536, v6")
    i("s_lshl_b32 s6, s4, 6"); i("v_add_u32 v8, s6, v3"); i("v_lshlrev_b32 v8, 10, v8"); i("v_lshl_add_u32 v8, v4, 4, v8")
    i("s_and_b32 s7, s5, 3"); i("s_lshl_b32 s7, s7, 8"); i("v_add_u32 v8, s7, v8"); i("v_add_u32 v9, 32768, v8")
    S = [16, 48]
    def ld_ssm(b, R):
        for mi in range(2):
            for ks in range(2): i(f"buffer_load_dwordx4 v[{R+8*mi+4*ks}:{R+8*mi+4*ks+3}], v{6+mi}, s[20:23], 0 offen offset:{b*64+ks*32}")
        for nj in range(2):
            for ks in range(2): i(f"buffer_load_dwordx4 v[{R+16+8*nj+4*ks}:{R+16+8*nj+4*ks+3}], v{8+nj}, s[16:19], 0 offen offset:{b*64+ks*32}")
    def mm(R, acc0, Bq):
        for ks in range(2):
            for mi in range(2):
                for nj in range(2):
                    A = acc0 + (mi*2+nj)*16
                    i(f"v_mfma_f32_32x32x16_bf16 a[{A}:{A+15}], v[{R+8*mi+4*ks}:{R+8*mi+4*ks+3}], v[{Bq+8*nj+4*ks}:{Bq+8*nj+4*ks+3}], a[{A}:{A+15}]")
    i("v_mul_u32_u24 v10, 3584, v5"); i("v_lshl_add_u32 v10, v4, 4, v10"); i("s_mul_i32 s7, s5, 448"); i("v_add_u32 v10, s7, v10"); i(f"v_add_u32 v11, {32*3584}, v10")
    i("v_lshrrev_b32 v12, 3, v2"); i("v_and_b32 v13, 7, v2")
    i("s_mul_i32 s7, s5, 229376"); i("s_lshl_b32 s6, s4, 7"); i("s_add_u32 s7, s7, s6")
    i("v_lshlrev_b32 v14, 10, v12"); i("v_lshl_add_u32 v14, v13, 4, v14"); i("v_add_u32 v14, s7, v14")
    i("s_mul_i32 s7, s5, 4608"); i("v_mul_u32_u24 v15, 144, v12"); i("v_lshl_add_u32 v15, v13, 4, v15"); i("v_add_u32 v15, s7, v15")
    i("v_bfe_u32 v80, v2, 5, 1"); i("v_bfe_u32 v81, v2, 2, 2"); i("v_lshl_add_u32 v80, v80, 3, v81"); i("v_mul_u32_u24 v80, 144, v80")
    i("v_bfe_u32 v81, v2, 4, 1"); i("v_lshl_add_u32 v80, v81, 5, v80"); i("v_and_b32 v81, 3, v2"); i("v_lshl_add_u32 v80, v81, 3, v80"); i("v_add_u32 v80, s7, v80")
    def ld_ffn(b, R):
        for mi in range(2):
            for ks in range(2): i(f"buffer_load_dwordx4 v[{R+8*mi+4*ks}:{R+8*mi+4*ks+3}], v{10+mi}, s[20:23], 0 offen offset:{b*64+ks*32}")
        i(f"s_mov_b32 s46, {b*32768}")
        for q in range(4): i(f"buffer_load_dwordx4 v[{R+16+4*q}:{R+19+4*q}], v14, s[12:15], s46 offen offset:{0}" .replace("v14", "v14") if q == 0 else f"buffer_load_dwordx4 v[{R+16+4*q}:{R+19+4*q}], v{81+q}, s[12:15], s46 offen")
    for q in range(1, 4): i(f"v_add_u32 v{81+q}, {8192*q}, v14")
    ld_ssm(0, S[0])
    for b in range(4):
        if b < 3: ld_ssm(b+1, S[(b+1)&1]); i("s_waitcnt vmcnt(8)")
        else: ld_ffn(0, S[0]); i("s_waitcnt vmcnt(8)")
        mm(S[b&1], 0, S[b&1]+16)
    for b in range(7):
        R = S[b&1]
        if b < 6: ld_ffn(b+1, S[(b+1)&1]); i("s_waitcnt vmcnt(8)")
        else: i("s_waitcnt vmcnt(0)")
        for q in range(4): i(f"ds_write_b128 v15, v[{R+16+4*q}:{R+19+4*q}] offset:{q*8*144}")
        i("s_waitcnt lgkmcnt(0)")
        for nj in range(2):
            for ks in range(2):
                for hh in range(2):
                    i(f"ds_read_b64_tr_b16 v[{88+8*nj+4*ks+2*hh}:{89+8*nj+4*ks+2*hh}], v80 offset:{(ks*16+hh*4)*144+nj*64}")
        i("s_waitcnt lgkmcnt(0)")
        mm(R, 64, 88)
        i("s_nop 7")
    i("s_nop 7"); i("s_nop 7")
    i("s_barrier")
    i("v_lshlrev_b32 v16, 2, v2"); i("s_and_b32 s7, s5, 3"); i("s_lshl_b32 s7, s7, 15"); i("v_add_u32 v16, s7, v16")
    i("s_cmp_lt_u32 s5, 4"); i("s_cbranch_scc1 K2_R1")
    for a in range(128):
        i(f"v_accvgpr_read_b32 v17, a{a}"); i(f"ds_write_b32 v16, v17 offset:{a*256}")
    i("s_waitcnt lgkmcnt(0)")
    e("K2_R1:")
    i("s_barrier")
    i("s_cmp_ge_u32 s5, 4"); i("s_cbranch_scc1 K2_R2")
    for a0 in range(0, 128, 8):
        for a in range(8): i(f"ds_read_b32 v{20+a}, v16 offset:{(a0+a)*256}")
        i("s_waitcnt lgkmcnt(0)")
        for a in range(8):
            i(f"v_accvgpr_read_b32 v17, a{a0+a}"); i(f"v_add_f32 v{20+a}, v{20+a}, v17"); i(f"ds_write_b32 v16, v{20+a} offset:{(a0+a)*256}")
    i("s_waitcnt lgkmcnt(0)")
    e("K2_R2:")
    i("s_barrier")
    i("v_lshlrev_b32 v16, 2, v2"); i("s_lshl_b32 s7, s5, 11"); i("v_add_u32 v16, s7, v16")
    for pq in range(1,4): i(f"v_add_u32 v{16+pq}, {32768*pq}, v16")
    for half in range(2):
        for a in range(8):
            for pq in range(4):
                i(f"ds_read_b32 v{100+pq}, v16 offset:{half*16384+a*256}" if pq == 0 else f"ds_read_b32 v{100+pq}, v{16+pq} offset:{half*16384+a*256}")
            i("s_waitcnt lgkmcnt(0)")
            i("v_add_f32 v100, v100, v101"); i("v_add_f32 v102, v102, v103"); i(f"v_add_f32 v{104+8*half+a}, v100, v102") if False else None
            i(f"v_add_f32 v{104+8*half+a}, v100, v102")
    e("; placeholder")
    srd(8, 24, 2048*1024); srd(48, 32, 1024); srd(52, 38, 1024); srd(56, 40, 2048*2048)
    i("s_lshr_b32 s6, s5, 1"); i("s_and_b32 s6, s6, 1"); i("s_lshl_b32 s6, s6, 5"); i("s_lshl_b32 s7, s4, 6"); i("s_add_u32 s6, s6, s7")
    i("v_add_u32 v30, s6, v3")
    i("s_lshr_b32 s6, s5, 2"); i("s_lshl_b32 s6, s6, 5"); i("s_and_b32 s7, s5, 1"); i("s_lshl_b32 s7, s7, 4"); i("s_add_u32 s6, s6, s7"); i("s_lshl_b32 s7, s3, 6"); i("s_add_u32 s6, s6, s7")
    i("v_lshl_add_u32 v31, v4, 2, s6")
    i("v_lshlrev_b32 v32, 1, v30")
    i("buffer_load_ushort v33, v32, s[48:51], 0 offen"); i("buffer_load_ushort v34, v32, s[52:55], 0 offen")
    i("v_lshlrev_b32 v35, 10, v31"); i("v_add_u32 v35, v35, v32")
    i(f"v_lshlrev_b32 v36, 2, v31"); i(f"v_add_u32 v36, {WS_G}, v36")
    i("v_lshlrev_b32 v37, 1, v35")
    for a in range(8):
        ro = (a & 3) + 8*(a >> 2)
        i(f"buffer_load_ushort v{40+a}, v35, s[8:11], 0 offen offset:{ro*1024}" if ro*1024 < 4096 else f"v_add_u32 v38, {ro*1024}, v35\n    buffer_load_ushort v{40+a}, v38, s[8:11], 0 offen")
        i(f"buffer_load_dword v{50+a}, v36, s[20:23], 0 offen offset:{ro*4}")
    i("s_waitcnt vmcnt(0)")
    i("v_lshlrev_b32 v33, 16, v33"); i("v_lshlrev_b32 v34, 16, v34")
    for a in range(8):
        ro = (a & 3) + 8*(a >> 2)
        i(f"v_lshlrev_b32 v60, 16, v{40+a}"); i("v_mul_f32 v60, v60, v33"); i("v_cvt_pk_bf16_f32 v60, v60, v60"); i("v_lshlrev_b32 v60, 16, v60")
        i(f"v_fma_f32 v60, 2.0, v{104+a}, v60")
        i(f"v_cvt_pk_bf16_f32 v61, v{112+a}, v{112+a}"); i("v_lshlrev_b32 v61, 16, v61"); i("v_add_f32 v61, v61, v34")
        i("v_cvt_pk_bf16_f32 v61, v61, v61"); i("v_lshlrev_b32 v61, 16, v61")
        i(f"v_sub_f32 v62, 1.0, v{50+a}"); i("v_cvt_pk_bf16_f32 v62, v62, v62"); i("v_lshlrev_b32 v62, 16, v62")
        i("v_mul_f32 v61, v61, v62"); i("v_cvt_pk_bf16_f32 v61, v61, v61"); i("v_lshlrev_b32 v61, 16, v61")
        i(f"v_fma_f32 v{64+a}, v{50+a}, v60, v61")
        i(f"v_add_u32 v38, {ro*2048}, v37"); i(f"buffer_store_dword v{64+a}, v38, s[56:59], 0 offen")
    e("K2_END:")
    i("s_endpgm")
    G['kdesc']("k2_kernel", 248, 120)
```

```python
import sys
L = []
def e(s=""): L.append(s)
def c(s): L.append("    ; " + s)
def i(s): L.append("    " + s)

WS_HG, WS_H, WS_FIN, WS_G = 0, 8<<20, 12<<20, 13<<20
K1_LDS = 135168
K2_LDS = 131072

def srd(d, b, nbytes):
    i(f"s_mov_b32 s{d}, s{b}"); i(f"s_mov_b32 s{d+1}, s{b+1}")
    i(f"s_mov_b32 s{d+2}, {nbytes}"); i(f"s_mov_b32 s{d+3}, 0x00020000")

def header():
    e("; gated mix: SSM (S5) + dense GELU FFN, two launches")
    e(f"; @launch kernel=k1_kernel grid=(256,1,1) block=(512,1,1) lds={K1_LDS}")
    e(f"; @launch kernel=k2_kernel grid=(256,1,1) block=(512,1,1) lds={K2_LDS}")
    e('.amdgcn_target "amdgcn-amd-amdhsa--gfx950"')
    e(".text")

def kdesc(name, nv, acc):
    e('.section .rodata,"a"'); e(".p2align 6")
    e(f".amdhsa_kernel {name}")
    e(f"  .amdhsa_next_free_vgpr {nv}"); e("  .amdhsa_next_free_sgpr 102")
    e(f"  .amdhsa_accum_offset {acc}"); e("  .amdhsa_group_segment_fixed_size 0")
    e("  .amdhsa_kernarg_size 144"); e("  .amdhsa_user_sgpr_count 2")
    e("  .amdhsa_user_sgpr_kernarg_segment_ptr 1"); e("  .amdhsa_system_sgpr_workgroup_id_x 1")
    e(".end_amdhsa_kernel"); e(".text")

def kstart(name):
    e(f".globl {name}"); e(".p2align 8"); e(f".type {name},@function"); e(f"{name}:")

from k1 import gen_k1
from k2 import gen_k2
header()
gen_k1(globals())
gen_k2(globals())
out = sys.argv[1] if len(sys.argv) > 1 else "gated_mix__ssm_conv_s5__dense_activation_gelu__prompt.s"
open(out, "w").write("\n".join(L) + "\n")
print("wrote", out, len(L), "lines")
```

```python
def gen_k1(G):
    e, c, i, srd = G['e'], G['c'], G['i'], G['srd']
    WS_HG, WS_H, WS_FIN, WS_G = G['WS_HG'], G['WS_H'], G['WS_FIN'], G['WS_G']
    G['kstart']("k1_kernel")
    import os
    ST=[0]
    def stamp():
        if os.environ.get("STAMP"):
            i("s_memtime s[62:63]"); i("s_waitcnt lgkmcnt(0)"); i("v_mov_b32 v39, s62"); i(f"v_accvgpr_write_b32 a{48+8+ST[0]}, v39"); ST[0]+=1
    def dump():
        if os.environ.get("STAMP"):
            stamp()
            i("s_lshl_b32 s62, s2, 6"); i("s_add_u32 s62, s62, 14680064"); i("v_mov_b32 v119, s62")
            for n in range(ST[0]): i(f"buffer_store_dword a{56+n}, v119, s[20:23], 0 offen offset:{4*n}")
            ST[0]=1
    i("s_cmp_ge_u32 s2, 256"); i("s_cbranch_scc1 K1_END")
    i("s_load_dwordx4 s[24:27], s[0:1], 0")
    i("s_load_dwordx4 s[28:31], s[0:1], 16")
    i("s_load_dwordx2 s[32:33], s[0:1], 32")
    i("s_load_dwordx2 s[34:35], s[0:1], 56")
    i("s_load_dwordx4 s[36:39], s[0:1], 80")
    i("s_load_dwordx2 s[40:41], s[0:1], 112")
    i("s_load_dwordx2 s[42:43], s[0:1], 128"); i("s_load_dwordx2 s[44:45], s[0:1], 136")
    i("s_lshr_b32 s3, s2, 4"); i("s_and_b32 s4, s2, 15")
    i("v_lshrrev_b32 v1, 6, v0"); i("s_nop 0"); i("v_readfirstlane_b32 s5, v1")
    i("v_and_b32 v2, 63, v0")
    i("v_and_b32 v3, 15, v0")
    i("v_bfe_u32 v4, v0, 4, 2")
    i("s_lshl_b32 s6, s3, 17")
    i("s_waitcnt lgkmcnt(0)")
    srd(8, 24, 2048*1024); srd(20, 44, 16<<20); stamp()
    i("v_lshrrev_b32 v8, 3, v0"); i("v_and_b32 v9, 7, v0")
    i("v_lshlrev_b32 v5, 10, v8"); i("v_lshl_add_u32 v5, v9, 4, v5"); i("v_add_u32 v5, s6, v5")
    i("v_add_u32 v6, 0x10000, v5")
    i("v_mul_u32_u24 v7, 144, v8"); i("v_lshl_add_u32 v7, v9, 4, v7")
    import os
    sk=os.environ.get("K1_SKIP","")
    i("s_cmp_lt_u32 s4, 8"); i("s_cbranch_scc1 K1_END" if sk=="ssm" else "s_cbranch_scc1 K1_SSM")
    if sk=="ffn": i("s_branch K1_END")

    i("s_sub_u32 s7, s4, 8"); i("s_mul_i32 s7, s7, 448")
    srd(12, 36, 512*3584)
    i("s_mov_b32 s48, 2341")
    for q in range(4):
        i(f"v_add_u32 v10, {512*q}, v0")
        if q == 3:
            i("v_cmp_le_u32 vcc, 1792, v10"); i("v_subrev_u32 v11, 256, v10"); i("s_nop 1"); i("v_cndmask_b32 v10, v10, v11, vcc")
        i("v_mul_lo_u32 v11, v10, s48"); i("v_lshrrev_b32 v11, 16, v11")
        i("v_mul_u32_u24 v12, 28, v11"); i("v_sub_u32 v12, v10, v12")
        i("v_mul_u32_u24 v13, 3584, v11"); i(f"v_lshl_add_u32 v{20+q}, v12, 4, v13"); i(f"v_add_u32 v{20+q}, s7, v{20+q}")
        i("v_bfe_u32 v13, v11, 3, 1"); i("v_lshlrev_b32 v13, 1, v13"); i("v_xor_b32 v12, v12, v13")
        i("v_mul_u32_u24 v13, 448, v11"); i(f"v_lshl_add_u32 v{24+q}, v12, 4, v13"); i(f"v_add_u32 v{24+q}, 18432, v{24+q}")
    i("s_lshr_b32 s49, s5, 1"); i("s_and_b32 s50, s5, 1")
    i("s_lshl_b32 s51, s49, 5")
    i("v_add_u32 v10, s51, v3"); i("v_mul_u32_u24 v28, 144, v10"); i("v_lshl_add_u32 v28, v4, 4, v28")
    i("v_add_u32 v29, 47104, v28")
    i("v_lshrrev_b32 v10, 2, v3"); i("v_lshl_add_u32 v10, v4, 3, v10"); i("v_mul_u32_u24 v11, 448, v10")
    i("v_and_b32 v12, 3, v3"); i("v_lshl_add_u32 v11, v12, 3, v11")
    i("s_mul_i32 s51, s50, 224"); i("s_add_u32 s51, s51, 18432"); i("v_add_u32 v11, s51, v11")
    i("v_and_b32 v12, 1, v4"); i("v_lshlrev_b32 v12, 5, v12")
    i("s_cmp_eq_u32 s50, 0"); i("s_cselect_b32 s51, 1, -1")
    i("v_mul_lo_u32 v12, v12, s51")
    i("v_add_u32 v30, v11, v12"); i("v_sub_u32 v31, v11, v12")
    i("v_add_u32 v32, 47104, v30"); i("v_add_u32 v33, 47104, v31")
    for a in range(56): i(f"v_accvgpr_write_b32 a{a}, 0")
    SA = [40, 64]
    def loads(ch, S):
        i(f"s_mov_b32 s46, {ch*128}"); i(f"s_mov_b32 s47, {ch*229376}")
        i(f"buffer_load_dwordx4 v[{S}:{S+3}], v5, s[8:11], s46 offen")
        i(f"buffer_load_dwordx4 v[{S+4}:{S+7}], v6, s[8:11], s46 offen")
        for q in range(4): i(f"buffer_load_dwordx4 v[{S+8+4*q}:{S+11+4*q}], v{20+q}, s[12:15], s47 offen")
    def writes(S, b):
        o = 47104*b
        i(f"ds_write_b128 v7, v[{S}:{S+3}] offset:{o}")
        i(f"ds_write_b128 v7, v[{S+4}:{S+7}] offset:{o+9216}")
        for q in range(4): i(f"ds_write_b128 v{24+q}, v[{S+8+4*q}:{S+11+4*q}] offset:{o}")
    loads(0, SA[0]); loads(1, SA[1])
    i("s_waitcnt vmcnt(6)"); writes(SA[0], 0); i("s_waitcnt lgkmcnt(0)"); loads(2, SA[0]); i("s_barrier")
    XF, WF = 88, 96
    stamp(); i("s_mov_b32 s57, 0")
    e("K1F_LOOP:")
    for ch in range(2):
        b = ch & 1
        for ks in range(2):
            xa = 29 if b else 28
            for tt in range(2): i(f"ds_read_b128 v[{XF+4*tt}:{XF+4*tt+3}], v{xa} offset:{tt*16*144+ks*64}")
            for tn in range(7):
                wa = (32 if b else 30) + (tn & 1)
                for hh in range(2):
                    i(f"ds_read_b64_tr_b16 v[{WF+4*tn+2*hh}:{WF+4*tn+2*hh+1}], v{wa} offset:{(ks*32+hh*4)*448+32*tn}")
            if ks == 0:
                i("s_waitcnt vmcnt(6)")
                writes(SA[(ch+1)&1], (ch+1)&1)
            i("s_waitcnt lgkmcnt(0)")
            if ks == 0:
                i("s_add_u32 s46, s46, 128"); i("s_add_u32 s47, s47, 229376")
                S = SA[(ch+1)&1]
                i(f"buffer_load_dwordx4 v[{S}:{S+3}], v5, s[8:11], s46 offen")
                i(f"buffer_load_dwordx4 v[{S+4}:{S+7}], v6, s[8:11], s46 offen")
                for q in range(4): i(f"buffer_load_dwordx4 v[{S+8+4*q}:{S+11+4*q}], v{20+q}, s[12:15], s47 offen")
            for tn in range(7):
                for tt in range(2):
                    A = (tn*2+tt)*4
                    i(f"v_mfma_f32_16x16x32_bf16 a[{A}:{A+3}], v[{WF+4*tn}:{WF+4*tn+3}], v[{XF+4*tt}:{XF+4*tt+3}], a[{A}:{A+3}]")
        i("s_barrier")
    i("s_add_u32 s57, s57, 1"); i("s_cmp_lt_u32 s57, 4"); i("s_cbranch_scc1 K1F_LOOP")
    i("s_waitcnt vmcnt(0)")
    stamp()
    srd(12, 38, 3584)
    i("v_lshlrev_b32 v10, 3, v4"); i("s_mul_i32 s51, s50, 224"); i("s_add_u32 s51, s51, s7"); i("v_add_u32 v10, s51, v10")
    for tn in range(7): i(f"buffer_load_dwordx2 v[{40+2*tn}:{41+2*tn}], v10, s[12:15], 0 offen offset:{32*tn}")
    i("s_lshl_b32 s52, s3, 7"); i("s_lshl_b32 s53, s49, 5"); i("s_add_u32 s52, s52, s53")
    i("v_add_u32 v11, s52, v3"); i("v_mul_u32_u24 v11, 3584, v11"); i("v_add_u32 v11, v11, v10")
    i("v_add_u32 v12, 57344, v11")
    i("s_mov_b32 s54, 0x3f4c422a"); i("s_mov_b32 s55, 0x3d122279"); i("s_mov_b32 s56, 0xc038aa3b")
    i("s_waitcnt vmcnt(0)"); i("s_nop 7")
    i("v_mov_b32 v76, s54"); i("v_mov_b32 v77, s54"); i("v_mov_b32 v56, s55"); i("v_mov_b32 v57, s55"); i("v_mov_b32 v58, s56"); i("v_mov_b32 v59, s56")
    i("v_mov_b32 v34, 1.0"); i("v_mov_b32 v35, 1.0")
    for tn in range(7):
        for h in range(2):
            i(f"v_lshlrev_b32 v{60+2*h}, 16, v{40+2*tn+h}"); i(f"v_and_b32 v{61+2*h}, 0xffff0000, v{40+2*tn+h}")
        for tt in range(2):
            A = (tn*2+tt)*4
            for r in range(4): i(f"v_accvgpr_read_b32 v{64+r}, a{A+r}")
            for h in range(2): i(f"v_cvt_pk_bf16_f32 v{70+h}, v{64+2*h}, v{65+2*h}")
            for h in range(2): i(f"v_lshlrev_b32 v{64+2*h}, 16, v{70+h}"); i(f"v_and_b32 v{65+2*h}, 0xffff0000, v{70+h}")
            for h in range(2): i(f"v_pk_add_f32 v[{64+2*h}:{65+2*h}], v[{64+2*h}:{65+2*h}], v[{60+2*h}:{61+2*h}]")
            for h in range(2): i(f"v_cvt_pk_bf16_f32 v{70+h}, v{64+2*h}, v{65+2*h}")
            for h in range(2): i(f"v_lshlrev_b32 v{64+2*h}, 16, v{70+h}"); i(f"v_and_b32 v{65+2*h}, 0xffff0000, v{70+h}")
            for h in range(2): i(f"v_pk_mul_f32 v[{72+2*h}:{73+2*h}], v[{64+2*h}:{65+2*h}], v[{64+2*h}:{65+2*h}]")
            for h in range(2): i(f"v_pk_fma_f32 v[{72+2*h}:{73+2*h}], v[{72+2*h}:{73+2*h}], v[56:57], v[76:77]")
            for h in range(2): i(f"v_pk_mul_f32 v[{72+2*h}:{73+2*h}], v[{72+2*h}:{73+2*h}], v[{64+2*h}:{65+2*h}]")
            for h in range(2): i(f"v_pk_mul_f32 v[{72+2*h}:{73+2*h}], v[{72+2*h}:{73+2*h}], v[58:59]")
            for r in range(4): i(f"v_exp_f32 v{72+r}, v{72+r}")
            for h in range(2): i(f"v_pk_add_f32 v[{72+2*h}:{73+2*h}], v[{72+2*h}:{73+2*h}], v[34:35]")
            for r in range(4): i(f"v_rcp_f32 v{72+r}, v{72+r}")
            for h in range(2): i(f"v_pk_mul_f32 v[{72+2*h}:{73+2*h}], v[{72+2*h}:{73+2*h}], v[{64+2*h}:{65+2*h}]")
            for h in range(2): i(f"v_cvt_pk_bf16_f32 v{78+h}, v{72+2*h}, v{73+2*h}")
            i(f"buffer_store_dwordx2 v[78:79], v{12 if tt else 11}, s[20:23], 0 offen offset:{32*tn}")
    dump(); i("s_branch K1_END")

    e("K1_SSM:")
    srd(12, 30, 512*1024); srd(16, 32, 512*1024)
    srd(48, 40, 1024)
    i("v_lshrrev_b32 v10, 5, v0"); i("s_lshl_b32 s7, s4, 4"); i("v_add_u32 v10, s7, v10")
    i("v_lshlrev_b32 v11, 10, v10"); i("v_add_u32 v11, s6, v11"); i("v_and_b32 v12, 31, v0"); i("v_lshl_add_u32 v11, v12, 5, v11")
    i("v_lshlrev_b32 v13, 5, v12")
    i("buffer_load_dwordx4 v[40:43], v11, s[8:11], 0 offen"); i("buffer_load_dwordx4 v[44:47], v11, s[8:11], 0 offen offset:16")
    i("buffer_load_dwordx4 v[48:51], v13, s[48:51], 0 offen"); i("buffer_load_dwordx4 v[52:55], v13, s[48:51], 0 offen offset:16")
    i("v_mov_b32 v14, 0"); i("s_waitcnt vmcnt(0)")
    for r in range(8):
        i(f"v_lshlrev_b32 v60, 16, v{40+r}"); i(f"v_and_b32 v61, 0xffff0000, v{40+r}")
        i(f"v_lshlrev_b32 v62, 16, v{48+r}"); i(f"v_and_b32 v63, 0xffff0000, v{48+r}")
        i("v_mul_f32 v60, v60, v62"); i("v_mul_f32 v61, v61, v63"); i("v_cvt_pk_bf16_f32 v60, v60, v61")
        i("v_lshlrev_b32 v61, 16, v60"); i("v_and_b32 v60, 0xffff0000, v60"); i("v_add_f32 v14, v14, v61"); i("v_add_f32 v14, v14, v60")
    for m in (0x041F, 0x081F, 0x101F, 0x201F, 0x401F):
        i(f"ds_swizzle_b32 v15, v14 offset:{m}"); i("s_waitcnt lgkmcnt(0)"); i("v_add_f32 v14, v14, v15")
    i("v_cvt_pk_bf16_f32 v14, v14, v14"); i("v_lshlrev_b32 v14, 16, v14")
    i("v_mul_f32 v14, 0xbfb8aa3b, v14"); i("v_exp_f32 v14, v14"); i("s_nop 0"); i("v_add_f32 v14, 1.0, v14"); i("v_rcp_f32 v14, v14"); i("s_nop 0")
    i("v_cvt_pk_bf16_f32 v14, v14, v14"); i("v_lshlrev_b32 v14, 16, v14")
    i("s_lshl_b32 s52, s3, 7"); i("v_add_u32 v10, s52, v10"); i("v_lshlrev_b32 v10, 2, v10"); i(f"v_add_u32 v10, {WS_G}, v10")
    i("buffer_store_dword v14, v10, s[20:23], 0 offen")
    i("s_lshl_b32 s7, s4, 16")
    i("v_lshlrev_b32 v20, 10, v8"); i("v_lshl_add_u32 v20, v9, 4, v20"); i("v_add_u32 v20, s7, v20")
    i("v_add_u32 v24, 18432, v7")
    i("s_lshr_b32 s49, s5, 1"); i("s_and_b32 s50, s5, 1"); i("s_lshl_b32 s51, s49, 5")
    i("v_add_u32 v10, s51, v3"); i("v_mul_u32_u24 v28, 144, v10"); i("v_lshl_add_u32 v28, v4, 4, v28"); i("v_add_u32 v29, 47104, v28")
    i("s_lshl_b32 s51, s50, 6"); i("v_add_u32 v10, s51, v3"); i("v_mul_u32_u24 v30, 144, v10"); i("v_lshl_add_u32 v30, v4, 4, v30")
    i("v_add_u32 v30, 18432, v30"); i("v_add_u32 v31, 47104, v30")
    for a in range(32): i(f"v_accvgpr_write_b32 a{a}, 0")
    def loads2(ch, S):
        i(f"s_mov_b32 s46, {ch*128}")
        i(f"buffer_load_dwordx4 v[{S}:{S+3}], v5, s[8:11], s46 offen")
        i(f"buffer_load_dwordx4 v[{S+4}:{S+7}], v6, s[8:11], s46 offen")
        i(f"buffer_load_dwordx4 v[{S+8}:{S+11}], v20, s[12:15], s46 offen")
        i(f"buffer_load_dwordx4 v[{S+12}:{S+15}], v20, s[16:19], s46 offen")
    def writes2(S, b):
        o = 47104*b
        i(f"ds_write_b128 v7, v[{S}:{S+3}] offset:{o}"); i(f"ds_write_b128 v7, v[{S+4}:{S+7}] offset:{o+9216}")
        i(f"ds_write_b128 v24, v[{S+8}:{S+11}] offset:{o}"); i(f"ds_write_b128 v24, v[{S+12}:{S+15}] offset:{o+9216}")
    loads2(0, SA[0]); loads2(1, SA[1])
    i("s_waitcnt vmcnt(4)"); writes2(SA[0], 0); i("s_waitcnt lgkmcnt(0)"); loads2(2, SA[0]); i("s_barrier")
    stamp(); i("s_mov_b32 s57, 0")
    e("K1S_LOOP:")
    for ch in range(2):
        b = ch & 1
        for ks in range(2):
            for tt in range(2): i(f"ds_read_b128 v[{XF+4*tt}:{XF+4*tt+3}], v{29 if b else 28} offset:{tt*16*144+ks*64}")
            for tn in range(4): i(f"ds_read_b128 v[{WF+4*tn}:{WF+4*tn+3}], v{31 if b else 30} offset:{tn*16*144+ks*64}")
            if ks == 0:
                i("s_waitcnt vmcnt(4)")
                writes2(SA[(ch+1)&1], (ch+1)&1)
            i("s_waitcnt lgkmcnt(0)")
            if ks == 0:
                S = SA[(ch+1)&1]
                i("s_add_u32 s46, s46, 128")
                i(f"buffer_load_dwordx4 v[{S}:{S+3}], v5, s[8:11], s46 offen")
                i(f"buffer_load_dwordx4 v[{S+4}:{S+7}], v6, s[8:11], s46 offen")
                i(f"buffer_load_dwordx4 v[{S+8}:{S+11}], v20, s[12:15], s46 offen")
                i(f"buffer_load_dwordx4 v[{S+12}:{S+15}], v20, s[16:19], s46 offen")
            for tn in range(4):
                for tt in range(2):
                    A = (tn*2+tt)*4
                    i(f"v_mfma_f32_16x16x32_bf16 a[{A}:{A+3}], v[{XF+4*tt}:{XF+4*tt+3}], v[{WF+4*tn}:{WF+4*tn+3}], a[{A}:{A+3}]")
        i("s_barrier")
    i("s_add_u32 s57, s57, 1"); i("s_cmp_lt_u32 s57, 4"); i("s_cbranch_scc1 K1S_LOOP")
    i("s_waitcnt vmcnt(0)")
    stamp()
    i("s_lshl_b32 s51, s49, 5"); i("v_lshl_add_u32 v10, v4, 2, s51"); i("v_mul_u32_u24 v10, 528, v10")
    i("s_lshl_b32 s51, s50, 8"); i("v_lshl_add_u32 v11, v3, 2, s51"); i("v_add_u32 v10, v10, v11")
    i("s_nop 7")
    for tn in range(4):
        for tt in range(2):
            for r in range(4):
                i(f"v_accvgpr_read_b32 v12, a{(tn*2+tt)*4+r}")
                i(f"ds_write_b32 v10, v12 offset:{(16*tt+r)*528+64*tn}")
    srd(48, 26, 1024); srd(52, 28, 1024); srd(56, 34, 1024)
    i("v_and_b32 v12, 31, v0"); i("v_lshrrev_b32 v13, 5, v0")
    i("s_lshl_b32 s7, s4, 7"); i("v_lshl_add_u32 v14, v12, 2, s7")
    i("buffer_load_dword v40, v14, s[48:51], 0 offen"); i("buffer_load_dword v41, v14, s[52:55], 0 offen"); i("buffer_load_dword v42, v14, s[56:59], 0 offen")
    i("s_waitcnt vmcnt(0)")
    for u in range(2):
        ex = (lambda d, s: i(f"v_lshlrev_b32 v{d}, 16, v{s}")) if u == 0 else (lambda d, s: i(f"v_and_b32 v{d}, 0xffff0000, v{s}"))
        ex(60, 40); ex(61, 41); ex(62, 42)
        i("v_mul_f32 v62, 0x3fb8aa3b, v62"); i("v_exp_f32 v62, v62"); i("s_nop 0"); i("v_cvt_pk_bf16_f32 v62, v62, v62"); i("v_lshlrev_b32 v62, 16, v62")
        i("v_mul_f32 v63, v62, v60"); i("v_mul_f32 v64, v62, v61")
        i("v_mul_f32 v63, 0x3fb8aa3b, v63"); i("v_exp_f32 v63, v63"); i("v_mul_f32 v64, 0.15915494, v64"); i("v_cos_f32 v65, v64"); i("v_sin_f32 v66, v64"); i("s_nop 0")
        i(f"v_mul_f32 v{44+u}, v63, v65"); i(f"v_mul_f32 v{46+u}, v63, v66")
        i(f"v_subrev_f32 v65, 1.0, v{44+u}")
        i("v_mul_f32 v66, v60, v60"); i("v_fma_f32 v66, v61, v61, v66"); i("v_rcp_f32 v66, v66")
        i(f"v_mul_f32 v67, v65, v60"); i(f"v_fma_f32 v67, v{46+u}, v61, v67")
        i(f"v_mul_f32 v68, v{46+u}, v60"); i(f"v_fma_f32 v68, -v65, v61, v68")
        i(f"v_mul_f32 v{48+u}, v67, v66"); i(f"v_mul_f32 v{50+u}, v68, v66")
    i("s_waitcnt lgkmcnt(0)"); i("s_barrier")
    i("v_mul_u32_u24 v15, 4224, v13"); i("v_lshl_add_u32 v15, v12, 3, v15")
    for k in range(8):
        i(f"ds_read_b64 v[{100+4*k}:{101+4*k}], v15 offset:{k*528}"); i(f"ds_read_b64 v[{102+4*k}:{103+4*k}], v15 offset:{k*528+256}")
    i("s_waitcnt lgkmcnt(0)")
    def cmad(dr, di, ar, ai, br, bi, cr, ci):
        i(f"v_fma_f32 v70, v{ar}, v{br}, v{cr}"); i(f"v_fma_f32 v71, v{ar}, v{bi}, v{ci}")
        i(f"v_fma_f32 v69, -v{ai}, v{bi}, v70"); i(f"v_fma_f32 v{di}, v{ai}, v{br}, v71"); i(f"v_mov_b32 v{dr}, v69")
    for k in range(1, 8):
        for u in range(2):
            cmad(100+4*k+u, 102+4*k+u, 44+u, 46+u, 96+4*k+u, 98+4*k+u, 100+4*k+u, 102+4*k+u)
    for u in range(2):
        i(f"v_mov_b32 v{52+u}, v{44+u}"); i(f"v_mov_b32 v{54+u}, v{46+u}")
        for _ in range(3):
            i(f"v_mul_f32 v70, v{52+u}, v{52+u}"); i(f"v_mul_f32 v71, v{52+u}, v{54+u}")
            i(f"v_fma_f32 v{52+u}, -v{54+u}, v{54+u}, v70"); i(f"v_add_f32 v{54+u}, v71, v71")
    SF, CS, PW, CIN = 0, 8192, 16384, 24576
    i("v_lshlrev_b32 v16, 4, v0"); i("v_add_u32 v16, 67584, v16"); i(f"ds_write_b128 v16, v[128:131] offset:{SF}")
    i("s_waitcnt lgkmcnt(0)"); i("s_barrier")
    i("s_cmp_lg_u32 s5, 0"); i("s_cbranch_scc1 K1_WAITC")
    i("v_lshlrev_b32 v17, 4, v12"); i("v_add_u32 v97, 67584, v17")
    for r in range(4): i(f"v_mov_b32 v{72+r}, 0")
    i("v_mov_b32 v76, 1.0"); i("v_mov_b32 v77, 1.0"); i("v_mov_b32 v78, 0"); i("v_mov_b32 v79, 0")
    for s in range(16):
        i(f"ds_read_b128 v[80:83], v97 offset:{SF+512*s}")
        i(f"ds_write_b128 v97, v[72:75] offset:{CS+512*s}"); i(f"ds_write_b128 v97, v[76:79] offset:{PW+512*s}")
        i("s_waitcnt lgkmcnt(0)")
        for u in range(2):
            cmad(72+u, 74+u, 52+u, 54+u, 72+u, 74+u, 80+u, 82+u)
            i(f"v_mul_f32 v84, v{76+u}, v{52+u}"); i(f"v_mul_f32 v85, v{76+u}, v{54+u}")
            i(f"v_fma_f32 v{76+u}, -v{78+u}, v{54+u}, v84"); i(f"v_fma_f32 v{78+u}, v{78+u}, v{52+u}, v85")
    i("s_lshl_b32 s7, s3, 3"); i("s_add_u32 s7, s7, s4"); i("s_lshl_b32 s7, s7, 9"); i(f"s_add_u32 s7, s7, {WS_FIN}")
    i("v_add_u32 v18, s7, v17")
    i("buffer_store_dwordx4 v[72:75], v18, s[20:23], 0 offen sc1")
    i("s_waitcnt vmcnt(0)")
    srd(48, 42, 256)
    i("s_lshl_b32 s7, 1, s3"); i("v_mov_b32 v19, s7"); i("s_lshl_b32 s52, s4, 2"); i("v_mov_b32 v86, s52")
    i("v_cmp_eq_u32 vcc, 0, v2"); i("s_and_saveexec_b64 s[60:61], vcc")
    i("buffer_atomic_or v19, v86, s[48:51], 0 offen sc1")
    i("s_mov_b64 exec, s[60:61]")
    i("s_sub_u32 s53, s7, 1")
    e("K1_POLL:")
    i("buffer_load_dword v87, v86, s[48:51], 0 offen sc1"); i("s_waitcnt vmcnt(0)")
    i("v_readfirstlane_b32 s54, v87"); i("s_and_b32 s54, s54, s53"); i("s_cmp_eq_u32 s54, s53"); i("s_cbranch_scc1 K1_GOT")
    i("s_sleep 2"); i("s_branch K1_POLL")
    e("K1_GOT:")
    i(f"ds_write_b128 v97, v[76:79] offset:{CIN}"); i("s_waitcnt lgkmcnt(0)")
    e("K1_WAITC:")
    i("s_barrier"); stamp()
    i("v_lshlrev_b32 v17, 4, v12"); i("v_add_u32 v97, 67584, v17")
    FL = 28672
    for rr in range(2):
        i(f"s_add_u32 s54, s5, {8*rr}"); i("s_cmp_ge_u32 s54, s3"); i(f"s_cbranch_scc1 K1_SK{rr}")
        i("s_lshl_b32 s7, s54, 3"); i("s_add_u32 s7, s7, s4"); i("s_lshl_b32 s7, s7, 9"); i(f"s_add_u32 s7, s7, {WS_FIN}"); i("v_add_u32 v18, s7, v17")
        i("buffer_load_dwordx4 v[80:83], v18, s[20:23], 0 offen sc1"); i("s_lshl_b32 s7, s54, 9"); i("v_add_u32 v19, s7, v97")
        i("s_waitcnt vmcnt(0)"); i(f"ds_write_b128 v19, v[80:83] offset:{FL}"); i("s_waitcnt lgkmcnt(0)")
        e(f"K1_SK{rr}:")
    i("s_barrier")
    i(f"ds_read_b128 v[76:79], v97 offset:{CIN}")
    for r in range(4): i(f"v_mov_b32 v{80+r}, 0")
    i("s_mov_b32 s55, 0"); i("v_mov_b32 v19, v97"); i("s_waitcnt lgkmcnt(0)")
    e("K1_HORN:")
    i("s_cmp_ge_u32 s55, s3"); i("s_cbranch_scc1 K1_HDONE")
    i(f"ds_read_b128 v[84:87], v19 offset:{FL}"); i("v_add_u32 v19, 512, v19"); i("s_waitcnt lgkmcnt(0)")
    for u in range(2): cmad(80+u, 82+u, 76+u, 78+u, 80+u, 82+u, 84+u, 86+u)
    i("s_add_u32 s55, s55, 1"); i("s_branch K1_HORN")
    e("K1_HDONE:")
    i(f"ds_read_b128 v[72:75], v16 offset:{CS}"); i(f"ds_read_b128 v[76:79], v16 offset:{PW}")
    i("s_waitcnt lgkmcnt(0)")
    for u in range(2): cmad(72+u, 74+u, 76+u, 78+u, 80+u, 82+u, 72+u, 74+u)
    i("s_lshl_b32 s7, s3, 7"); i("v_lshl_add_u32 v18, v13, 3, s7"); i("v_lshlrev_b32 v18, 11, v18")
    i("s_lshl_b32 s7, s4, 7"); i(f"s_add_u32 s7, s7, {WS_H}"); i("v_lshl_add_u32 v19, v12, 2, s7"); i("v_add_u32 v18, v18, v19")
    i("v_add_u32 v19, 4096, v18")
    for k in range(8):
        for u in range(2):
            i(f"v_mul_f32 v84, v{44+u}, v{72+u}"); i(f"v_mul_f32 v85, v{44+u}, v{74+u}")
            i(f"v_fma_f32 v84, -v{46+u}, v{74+u}, v84"); i(f"v_fma_f32 v{74+u}, v{46+u}, v{72+u}, v85"); i(f"v_mov_b32 v{72+u}, v84")
            i(f"v_add_f32 v86, v{100+4*k+u}, v{72+u}"); i(f"v_add_f32 v87, v{102+4*k+u}, v{74+u}")
            i(f"v_mul_f32 v88, v{48+u}, v86"); i(f"v_fma_f32 v{90+u}, -v{50+u}, v87, v88")
            i(f"v_mul_f32 v88, v{48+u}, v87"); i(f"v_fma_f32 v88, v{50+u}, v86, v88"); i(f"v_sub_f32 v{92+u}, 0, v88")
        i("v_cvt_pk_bf16_f32 v94, v90, v91"); i("v_cvt_pk_bf16_f32 v95, v92, v93")
        i(f"v_add_u32 v89, {k*2048}, v18")
        i("buffer_store_dword v94, v89, s[20:23], 0 offen"); i("buffer_store_dword v95, v89, s[20:23], 0 offen offset:1024")
    dump()
    e("K1_END:")
    i("s_endpgm")
    G['kdesc']("k1_kernel", 208, 144)
```

```python
def gen_k2(G):
    e, c, i, srd = G['e'], G['c'], G['i'], G['srd']
    WS_HG, WS_H, WS_FIN, WS_G = G['WS_HG'], G['WS_H'], G['WS_FIN'], G['WS_G']
    G['kstart']("k2_kernel")
    import os
    ST=[0]
    def stamp():
        if os.environ.get("STAMP2"):
            i("s_memtime s[62:63]"); i("s_waitcnt lgkmcnt(0)"); i(f"v_mov_b32 v{72+ST[0]}, s62"); ST[0]+=1
    i("s_cmp_ge_u32 s2, 256"); i("s_cbranch_scc1 K2_END")
    i("s_load_dwordx2 s[24:25], s[0:1], 0")
    i("s_load_dwordx4 s[28:31], s[0:1], 40")
    i("s_load_dwordx2 s[32:33], s[0:1], 64")
    i("s_load_dwordx4 s[36:39], s[0:1], 96")
    i("s_load_dwordx2 s[40:41], s[0:1], 120")
    i("s_load_dwordx2 s[44:45], s[0:1], 136")
    i("s_and_b32 s3, s2, 7"); i("s_lshl_b32 s3, s3, 2"); i("s_bfe_u32 s6, s2, 0x20003"); i("s_add_u32 s3, s3, s6"); i("s_lshr_b32 s4, s2, 5")
    i("v_lshrrev_b32 v1, 6, v0"); i("s_nop 0"); i("v_readfirstlane_b32 s5, v1")
    i("v_and_b32 v2, 63, v0"); i("v_and_b32 v3, 31, v0"); i("v_bfe_u32 v4, v0, 5, 1")
    i("s_waitcnt lgkmcnt(0)")
    srd(20, 44, 16<<20); srd(12, 36, 1792*1024)
    i("s_cmp_lt_u32 s5, 4"); i("s_cselect_b32 s16, s28, s30"); i("s_cselect_b32 s17, s29, s31"); i("s_mov_b32 s18, 524288"); i("s_mov_b32 s19, 0x00020000")
    for a in range(128): i(f"v_accvgpr_write_b32 a{a}, 0")
    i("v_lshrrev_b32 v5, 4, v2"); i("v_and_b32 v6, 15, v2")
    for q in range(2):
        i(f"s_lshl_b32 s6, s5, 3"); i(f"s_add_u32 s6, s6, {4*q}"); i("v_add_u32 v7, s6, v5")
        i("v_and_b32 v12, 7, v7"); i("v_xor_b32 v12, v12, v6")
        i("s_lshl_b32 s6, s3, 6"); i("v_add_u32 v13, s6, v7")
        i(f"v_lshlrev_b32 v{20+q}, 11, v13"); i(f"v_lshl_add_u32 v{20+q}, v12, 4, v{20+q}"); i(f"v_add_u32 v{20+q}, {WS_H}, v{20+q}")
        i(f"v_mul_u32_u24 v{22+q}, 3584, v13"); i(f"v_lshl_add_u32 v{22+q}, v12, 4, v{22+q}")
        i("s_lshl_b32 s6, s4, 6"); i("v_add_u32 v13, s6, v7"); i(f"v_lshlrev_b32 v{24+q}, 10, v13"); i(f"v_lshl_add_u32 v{24+q}, v12, 4, v{24+q}")
        i(f"s_lshl_b32 s6, s5, 4"); i(f"s_add_u32 s6, s6, {8*q}"); i("v_lshrrev_b32 v7, 3, v2"); i("v_add_u32 v7, s6, v7")
        i("v_bfe_u32 v12, v7, 1, 1"); i("v_lshlrev_b32 v12, 2, v12"); i("v_and_b32 v13, 7, v2"); i("v_xor_b32 v12, v12, v13")
        i(f"v_lshlrev_b32 v{26+q}, 10, v7"); i(f"v_lshl_add_u32 v{26+q}, v12, 4, v{26+q}"); i("s_lshl_b32 s6, s4, 7"); i(f"v_add_u32 v{26+q}, s6, v{26+q}")
    srd(48, 28, 524288); srd(52, 30, 524288)
    i("s_lshl_b32 s58, s5, 11")
    for mi in range(2):
        i(f"v_add_u32 v7, {32*mi}, v3"); i("v_and_b32 v12, 7, v7"); i("s_lshl_b32 s6, s5, 1"); i("v_add_u32 v13, s6, v4"); i("v_xor_b32 v12, v12, v13")
        i(f"v_lshlrev_b32 v{80+mi}, 8, v7"); i(f"v_lshl_add_u32 v{80+mi}, v12, 4, v{80+mi}")
    for hh in range(2):
        for nj in range(2):
            i("v_bfe_u32 v7, v2, 5, 1"); i("v_bfe_u32 v12, v2, 2, 2"); i("v_lshl_add_u32 v7, v7, 3, v12"); i(f"s_lshl_b32 s6, s5, 4"); i(f"s_add_u32 s6, s6, {4*hh}"); i("v_add_u32 v7, s6, v7")
            i("v_bfe_u32 v12, v2, 4, 1"); i("v_lshlrev_b32 v12, 1, v12"); i("v_bfe_u32 v13, v2, 1, 1"); i("v_add_u32 v12, v12, v13"); i(f"v_add_u32 v12, {4*nj}, v12")
            i("v_bfe_u32 v13, v7, 1, 1"); i("v_lshlrev_b32 v13, 2, v13"); i("v_xor_b32 v12, v12, v13")
            R = 82+2*hh+nj
            i(f"v_lshlrev_b32 v{R}, 7, v7"); i(f"v_lshl_add_u32 v{R}, v12, 4, v{R}"); i("v_and_b32 v13, 1, v2"); i(f"v_lshl_add_u32 v{R}, v13, 3, v{R}"); i(f"v_add_u32 v{R}, 16384, v{R}")
    for r in range(6): i(f"v_add_u32 v{110+r}, 65536, v{80+r}")
    def dma(ch):
        if ch > 21: return
        base = (ch & 3) * 32768
        for q in range(2):
            i(f"s_add_u32 s59, s58, {base + 1024*q}"); i("s_mov_b32 m0, s59")
            if ch < 8: i(f"s_mov_b32 s60, {ch*256}"); i(f"buffer_load_dwordx4 v{20+q}, s[20:23], s60 offen lds")
            else: i(f"s_mov_b32 s60, {(ch-8)*256}"); i(f"buffer_load_dwordx4 v{22+q}, s[20:23], s60 offen lds")
        for q in range(2):
            i(f"s_add_u32 s59, s58, {base + 16384 + 1024*q}"); i("s_mov_b32 m0, s59")
            if ch < 8: i(f"s_mov_b32 s60, {(ch&3)*256}"); i(f"buffer_load_dwordx4 v{24+q}, s[{48 if ch<4 else 52}:{51 if ch<4 else 55}], s60 offen lds")
            else: i(f"s_mov_b32 s60, {(ch-8)*131072}"); i(f"buffer_load_dwordx4 v{26+q}, s[12:15], s60 offen lds")
    stamp(); dma(0); dma(1); dma(2)
    for ch in range(22):
        base = (ch & 1) * 32768; AB = 110 if (ch & 2) else 80
        n = min(2, 21-ch)
        i(f"s_waitcnt vmcnt({4*n})"); i("s_barrier")
        for mi in range(2): i(f"ds_read_b128 v[{88+4*mi}:{91+4*mi}], v{AB+mi} offset:{base}")
        if ch < 8:
            for nj in range(2): i(f"ds_read_b128 v[{100+4*nj}:{103+4*nj}], v{AB+nj} offset:{base+16384}")
        else:
            for nj in range(2):
                for hh in range(2): i(f"ds_read_b64_tr_b16 v[{100+4*nj+2*hh}:{101+4*nj+2*hh}], v{AB+2+2*hh+nj} offset:{base}")
        dma(ch+3)
        i("s_waitcnt lgkmcnt(0)")
        acc0 = 0 if ch < 8 else 64
        for mi in range(2):
            for nj in range(2):
                A = acc0 + (mi*2+nj)*16
                i(f"v_mfma_f32_32x32x16_bf16 a[{A}:{A+15}], v[{88+4*mi}:{91+4*mi}], v[{100+4*nj}:{103+4*nj}], a[{A}:{A+15}]")
    stamp(); i("s_nop 7"); i("s_nop 7")
    i("s_barrier")
    i("v_lshlrev_b32 v16, 4, v2"); i("s_lshl_b32 s7, s5, 14"); i("v_add_u32 v17, s7, v16")
    i("s_lshl_b32 s7, s5, 11"); i("v_add_u32 v18, s7, v16"); i("v_add_u32 v19, 65536, v18")
    for half in range(2):
        for q in range(16): i(f"ds_write_b128 v17, a[{64*half+4*q}:{64*half+4*q+3}] offset:{1024*q}")
        i("s_waitcnt lgkmcnt(0)"); i("s_barrier")
        for pw in range(8):
            for q in range(2):
                i(f"ds_read_b128 v[{28+8*pw+4*q}:{31+8*pw+4*q}], v{18 if pw<4 else 19} offset:{(pw&3)*16384+1024*q}")
        i("s_waitcnt lgkmcnt(0)")
        for r in range(8):
            i(f"v_add_f32 v{28+r}, v{28+r}, v{36+r}"); i(f"v_add_f32 v{44+r}, v{44+r}, v{52+r}"); i(f"v_add_f32 v{60+r}, v{60+r}, v{68+r}"); i(f"v_add_f32 v{76+r}, v{76+r}, v{84+r}")
            i(f"v_add_f32 v{28+r}, v{28+r}, v{44+r}"); i(f"v_add_f32 v{60+r}, v{60+r}, v{76+r}"); i(f"v_add_f32 v{104+8*half+r}, v{28+r}, v{60+r}")
        if half == 0: i("s_barrier")
    e("; placeholder")
    srd(8, 24, 2048*1024); srd(48, 32, 1024); srd(52, 38, 1024); srd(56, 40, 2048*2048)
    i("s_lshr_b32 s6, s5, 1"); i("s_and_b32 s6, s6, 1"); i("s_lshl_b32 s6, s6, 5"); i("s_lshl_b32 s7, s4, 6"); i("s_add_u32 s6, s6, s7")
    i("v_add_u32 v30, s6, v3")
    i("s_lshr_b32 s6, s5, 2"); i("s_lshl_b32 s6, s6, 5"); i("s_and_b32 s7, s5, 1"); i("s_lshl_b32 s7, s7, 4"); i("s_add_u32 s6, s6, s7"); i("s_lshl_b32 s7, s3, 6"); i("s_add_u32 s6, s6, s7")
    i("v_lshl_add_u32 v31, v4, 2, s6")
    i("v_lshlrev_b32 v32, 1, v30")
    i("buffer_load_ushort v33, v32, s[48:51], 0 offen"); i("buffer_load_ushort v34, v32, s[52:55], 0 offen")
    i("v_lshlrev_b32 v35, 10, v31"); i("v_add_u32 v35, v35, v32")
    i(f"v_lshlrev_b32 v36, 2, v31"); i(f"v_add_u32 v36, {WS_G}, v36")
    i("v_lshlrev_b32 v37, 1, v35")
    for a in range(8):
        ro = (a & 3) + 8*(a >> 2)
        i(f"buffer_load_ushort v{40+a}, v35, s[8:11], 0 offen offset:{ro*1024}" if ro*1024 < 4096 else f"v_add_u32 v38, {ro*1024}, v35\n    buffer_load_ushort v{40+a}, v38, s[8:11], 0 offen")
        i(f"buffer_load_dword v{50+a}, v36, s[20:23], 0 offen offset:{ro*4}")
    i("s_waitcnt vmcnt(0)")
    i("v_lshlrev_b32 v33, 16, v33"); i("v_lshlrev_b32 v34, 16, v34")
    for a in range(8):
        ro = (a & 3) + 8*(a >> 2)
        i(f"v_lshlrev_b32 v60, 16, v{40+a}"); i("v_mul_f32 v60, v60, v33"); i("v_cvt_pk_bf16_f32 v60, v60, v60"); i("v_lshlrev_b32 v60, 16, v60")
        i(f"v_fma_f32 v60, 2.0, v{104+a}, v60")
        i(f"v_cvt_pk_bf16_f32 v61, v{112+a}, v{112+a}"); i("v_lshlrev_b32 v61, 16, v61"); i("v_add_f32 v61, v61, v34")
        i("v_cvt_pk_bf16_f32 v61, v61, v61"); i("v_lshlrev_b32 v61, 16, v61")
        i(f"v_sub_f32 v62, 1.0, v{50+a}"); i("v_cvt_pk_bf16_f32 v62, v62, v62"); i("v_lshlrev_b32 v62, 16, v62")
        i("v_mul_f32 v61, v61, v62"); i("v_cvt_pk_bf16_f32 v61, v61, v61"); i("v_lshlrev_b32 v61, 16, v61")
        i(f"v_fma_f32 v{64+a}, v{50+a}, v60, v61")
        i(f"v_add_u32 v38, {ro*2048}, v37"); i(f"buffer_store_dword v{64+a}, v38, s[56:59], 0 offen")
    if os.environ.get("STAMP2"):
        stamp(); i("s_lshl_b32 s62, s2, 6"); i("s_add_u32 s62, s62, 14680064"); i("v_mov_b32 v71, s62")
        for n in range(ST[0]): i(f"buffer_store_dword v{72+n}, v71, s[20:23], 0 offen offset:{4*n}")
    e("K2_END:")
    i("s_endpgm")
    G['kdesc']("k2_kernel", 248, 120)
```

```python
def gen_k1(G):
    e, c, i, srd = G['e'], G['c'], G['i'], G['srd']
    WS_HG, WS_H, WS_FIN, WS_G = G['WS_HG'], G['WS_H'], G['WS_FIN'], G['WS_G']
    G['kstart']("k1_kernel")
    import os
    ST=[0]
    def stamp():
        if os.environ.get("STAMP"):
            i("s_memtime s[62:63]"); i("s_waitcnt lgkmcnt(0)"); i("v_mov_b32 v39, s62"); i(f"v_accvgpr_write_b32 a{112+ST[0]}, v39"); ST[0]+=1
    def dump():
        if os.environ.get("STAMP"):
            stamp()
            i("s_lshl_b32 s62, s2, 6"); i("s_add_u32 s62, s62, 14680064"); i("v_mov_b32 v119, s62")
            for n in range(ST[0]): i(f"buffer_store_dword a{112+n}, v119, s[20:23], 0 offen offset:{4*n}")
            ST[0]=1
    i("s_cmp_ge_u32 s2, 256"); i("s_cbranch_scc1 K1_END")
    i("s_load_dwordx4 s[24:27], s[0:1], 0")
    i("s_load_dwordx4 s[28:31], s[0:1], 16")
    i("s_load_dwordx2 s[32:33], s[0:1], 32")
    i("s_load_dwordx2 s[34:35], s[0:1], 56")
    i("s_load_dwordx4 s[36:39], s[0:1], 80")
    i("s_load_dwordx2 s[40:41], s[0:1], 112")
    i("s_load_dwordx2 s[42:43], s[0:1], 128"); i("s_load_dwordx2 s[44:45], s[0:1], 136")
    i("s_lshr_b32 s3, s2, 4"); i("s_and_b32 s4, s2, 15")
    i("v_lshrrev_b32 v1, 6, v0"); i("s_nop 0"); i("v_readfirstlane_b32 s5, v1")
    i("v_and_b32 v2, 63, v0")
    i("v_and_b32 v3, 15, v0")
    i("v_bfe_u32 v4, v0, 4, 2")
    i("s_lshl_b32 s6, s3, 17")
    i("s_waitcnt lgkmcnt(0)")
    srd(8, 24, 2048*1024); srd(20, 44, 16<<20); stamp()
    i("v_lshrrev_b32 v8, 3, v2"); i("v_and_b32 v9, 7, v2"); i("v_xor_b32 v10, v8, v9")
    i("s_lshl_b32 s7, s5, 4"); i("v_add_u32 v11, s7, v8")
    i("v_lshlrev_b32 v5, 10, v11"); i("v_lshl_add_u32 v5, v10, 4, v5"); i("v_mov_b32 v7, v5"); i("v_add_u32 v5, s6, v5"); i("v_add_u32 v6, 8192, v5")
    i("s_lshl_b32 s58, s5, 11")
    i("s_and_b32 s49, s5, 2"); i("s_lshr_b32 s49, s49, 1"); i("s_and_b32 s50, s5, 1"); i("s_lshr_b32 s61, s5, 2")
    i("s_lshl_b32 s51, s61, 2"); i("v_add_u32 v12, s51, v4"); i("v_and_b32 v13, 7, v3"); i("v_xor_b32 v12, v12, v13")
    i("s_lshl_b32 s51, s49, 6"); i("v_add_u32 v13, s51, v3"); i("v_lshlrev_b32 v28, 7, v13"); i("v_lshl_add_u32 v28, v12, 4, v28"); i("v_add_u32 v29, 90112, v28")
    import os
    sk=os.environ.get("K1_SKIP","")
    i("s_cmp_lt_u32 s4, 8"); i("s_cbranch_scc1 K1_END" if sk=="ssm" else "s_cbranch_scc1 K1_SSM")
    if sk=="ffn": i("s_branch K1_END")

    i("s_sub_u32 s7, s4, 8"); i("s_mul_i32 s7, s7, 448")
    srd(12, 36, 512*3584)
    i("s_mov_b32 s48, 2341")
    for q in range(4):
        i(f"s_lshl_b32 s51, s5, 6"); i(f"s_add_u32 s51, s51, {512*q}")
        if q == 3: i("s_cmp_ge_u32 s51, 1792"); i("s_cselect_b32 s52, 512, 0"); i("s_sub_u32 s51, s51, s52")
        i(f"s_lshl_b32 s{64+q}, s51, 4")
        i("v_add_u32 v10, s51, v2")
        i("v_mul_lo_u32 v11, v10, s48"); i("v_lshrrev_b32 v11, 16, v11")
        i("v_mul_u32_u24 v12, 28, v11"); i("v_sub_u32 v12, v10, v12")
        i("v_bfe_u32 v13, v11, 3, 1"); i("v_lshlrev_b32 v13, 1, v13"); i("v_xor_b32 v12, v12, v13")
        i("v_mul_u32_u24 v13, 3584, v11"); i(f"v_lshl_add_u32 v{20+q}, v12, 4, v13"); i(f"v_add_u32 v{20+q}, s7, v{20+q}")
    i("v_lshrrev_b32 v10, 2, v3"); i("v_lshl_add_u32 v10, v4, 3, v10"); i("s_lshl_b32 s51, s61, 5"); i("v_add_u32 v10, s51, v10"); i("v_mul_u32_u24 v11, 448, v10")
    i("v_and_b32 v12, 3, v3"); i("v_lshl_add_u32 v11, v12, 3, v11")
    i("s_mul_i32 s51, s50, 224"); i("s_add_u32 s51, s51, 16384"); i("v_add_u32 v11, s51, v11")
    i("v_and_b32 v12, 1, v4"); i("v_lshlrev_b32 v12, 5, v12")
    i("s_cmp_eq_u32 s50, 0"); i("s_cselect_b32 s51, 1, -1"); i("v_mul_lo_u32 v12, v12, s51")
    i("v_add_u32 v30, v11, v12"); i("v_sub_u32 v31, v11, v12")
    i("v_add_u32 v32, 90112, v30"); i("v_add_u32 v33, 90112, v31")
    for a_ in range(112): i(f"v_accvgpr_write_b32 a{a_}, 0")
    srd(76, 38, 3584)
    i("v_lshlrev_b32 v14, 3, v4"); i("s_mul_i32 s51, s50, 224"); i("s_add_u32 s51, s51, s7"); i("v_add_u32 v14, s51, v14")
    for tn in range(7): i(f"buffer_load_dwordx2 v[{118+2*tn}:{119+2*tn}], v14, s[76:79], 0 offen offset:{32*tn}")
    STG = 45056
    def dmaF(ch):
        if ch > 7: return
        base = (ch % 3) * STG
        i(f"s_mov_b32 s46, {ch*128}"); i(f"s_mov_b32 s47, {ch*229376}")
        for q in range(2):
            i(f"s_add_u32 s59, s58, {base+1024*q}"); i("s_mov_b32 m0, s59"); i("s_nop 0"); i(f"buffer_load_dwordx4 v{5+q}, s[8:11], s46 offen lds")
        for q in range(4):
            i(f"s_add_u32 s59, s{64+q}, {base+16384}"); i("s_mov_b32 m0, s59"); i("s_nop 0"); i(f"buffer_load_dwordx4 v{20+q}, s[12:15], s47 offen lds")
    XF, WF = 40, 56
    stamp(); dmaF(0); dmaF(1)
    for ch in range(8):
        st = ch % 3; o = 0 if st == 2 else st*STG
        i(f"s_waitcnt vmcnt({6 if ch < 7 else 0})"); i("s_barrier")
        for tt in range(4): i(f"ds_read_b128 v[{XF+4*tt}:{XF+4*tt+3}], v{29 if st==2 else 28} offset:{o+tt*2048}")
        for tn in range(7):
            wa = (32 if st==2 else 30) + (tn & 1)
            for hh in range(2): i(f"ds_read_b64_tr_b16 v[{WF+4*tn+2*hh}:{WF+4*tn+2*hh+1}], v{wa} offset:{o+hh*4*448+32*tn}")
        dmaF(ch+2)
        for tn in range(7):
            i(f"s_waitcnt lgkmcnt({12-2*tn})")
            for tt in range(4):
                A = (tn*4+tt)*4
                i(f"v_mfma_f32_16x16x32_bf16 a[{A}:{A+3}], v[{WF+4*tn}:{WF+4*tn+3}], v[{XF+4*tt}:{XF+4*tt+3}], a[{A}:{A+3}]")
    i("s_nop 7"); i("s_nop 7"); i("s_barrier")
    i("v_lshlrev_b32 v34, 4, v2"); i("s_mul_i32 s51, s5, 14336"); i("v_add_u32 v35, s51, v34")
    i("s_xor_b32 s52, s5, 4"); i("s_mul_i32 s51, s52, 14336"); i("v_add_u32 v36, s51, v34")
    i("s_cmp_eq_u32 s61, 0"); i("s_cbranch_scc0 K1F_X1")
    for tn in range(7):
        for t2 in range(2): A=(tn*4+2+t2)*4; i(f"ds_write_b128 v35, a[{A}:{A+3}] offset:{(tn*2+t2)*1024}")
    i("s_branch K1F_X2"); e("K1F_X1:")
    for tn in range(7):
        for t2 in range(2): A=(tn*4+t2)*4; i(f"ds_write_b128 v35, a[{A}:{A+3}] offset:{(tn*2+t2)*1024}")
    for tn in range(7):
        for t2 in range(2):
            for r in range(4): i(f"v_accvgpr_read_b32 v37, a{(tn*4+2+t2)*4+r}"); i(f"v_accvgpr_write_b32 a{(tn*4+t2)*4+r}, v37")
    e("K1F_X2:")
    for tn in range(7):
        for h in range(2): i(f"v_accvgpr_write_b32 a{(tn*4+2)*4+h}, v{118+2*tn+h}")
    i("s_waitcnt lgkmcnt(0)"); i("s_barrier")
    for tn in range(7):
        for t2 in range(2): i(f"ds_read_b128 v[{80+(tn*2+t2)*4}:{83+(tn*2+t2)*4}], v36 offset:{(tn*2+t2)*1024}")
    i("s_waitcnt lgkmcnt(0)")
    stamp()
    i("s_lshl_b32 s52, s3, 7"); i("s_lshl_b32 s53, s49, 6"); i("s_add_u32 s52, s52, s53"); i("s_lshl_b32 s53, s61, 5"); i("s_add_u32 s52, s52, s53")
    i("v_add_u32 v11, s52, v3"); i("v_mul_u32_u24 v11, 3584, v11"); i("v_add_u32 v11, v11, v14")
    i("v_add_u32 v12, 57344, v11")
    i("s_lshl_b32 s53, s49, 6"); i("s_lshl_b32 s52, s61, 5"); i("s_add_u32 s53, s53, s52"); i("v_add_u32 v15, s53, v3"); i("v_mul_u32_u24 v15, 464, v15")
    i("s_mul_i32 s53, s50, 224"); i("v_lshl_add_u32 v16, v4, 3, s53"); i("v_add_u32 v15, v15, v16")
    i("s_barrier")
    i("s_mov_b32 s54, 0x3f4c422a"); i("s_mov_b32 s55, 0x3d122279"); i("s_mov_b32 s56, 0xc038aa3b")
    i("s_waitcnt vmcnt(0)"); i("s_nop 7")
    i("v_mov_b32 v76, s54"); i("v_mov_b32 v77, s54"); i("v_mov_b32 v56, s55"); i("v_mov_b32 v57, s55"); i("v_mov_b32 v58, s56"); i("v_mov_b32 v59, s56")
    i("v_mov_b32 v34, 1.0"); i("v_mov_b32 v35, 1.0")
    for tn in range(7):
        for h in range(2):
            i(f"v_accvgpr_read_b32 v37, a{(tn*4+2)*4+h}"); i(f"v_lshlrev_b32 v{60+2*h}, 16, v37"); i(f"v_and_b32 v{61+2*h}, 0xffff0000, v37")
        X, T, P = 40, 48, 64
        for tt in range(2):
            for r in range(4): i(f"v_accvgpr_read_b32 v{X+4*tt+r}, a{(tn*4+tt)*4+r}")
        for n in range(8): i(f"v_add_f32 v{X+n}, v{X+n}, v{80+tn*8+n}")
        def rnd():
            for h in range(4): i(f"v_cvt_pk_bf16_f32 v{P+h}, v{X+2*h}, v{X+2*h+1}")
            for h in range(4): i(f"v_lshlrev_b32 v{X+2*h}, 16, v{P+h}"); i(f"v_and_b32 v{X+2*h+1}, 0xffff0000, v{P+h}")
        rnd()
        for n in range(8): i(f"v_add_f32 v{X+n}, v{X+n}, v{60+(n&3)}")
        rnd()
        for n in range(8): i(f"v_mul_f32 v{T+n}, v{X+n}, v{X+n}")
        for n in range(8): i(f"v_fma_f32 v{T+n}, v{T+n}, v56, v76")
        for n in range(8): i(f"v_mul_f32 v{T+n}, v{T+n}, v{X+n}")
        for n in range(8): i(f"v_mul_f32 v{T+n}, v{T+n}, v58")
        for n in range(8): i(f"v_exp_f32 v{T+n}, v{T+n}")
        for n in range(8): i(f"v_add_f32 v{T+n}, 1.0, v{T+n}")
        for n in range(8): i(f"v_rcp_f32 v{T+n}, v{T+n}")
        for n in range(8): i(f"v_mul_f32 v{T+n}, v{T+n}, v{X+n}")
        for h in range(4): i(f"v_cvt_pk_bf16_f32 v{P+4+h}, v{T+2*h}, v{T+2*h+1}")
        for tt in range(2): i(f"ds_write_b64 v15, v[{P+4+2*tt}:{P+5+2*tt}] offset:{tt*16*464+32*tn}")
    i("s_waitcnt lgkmcnt(0)"); i("s_barrier")
    i("s_lshl_b32 s52, s3, 7"); i("s_mul_i32 s52, s52, 3584"); i("s_add_u32 s52, s52, s7")
    for q in range(7):
        i(f"v_add_u32 v40, {512*q}, v0"); i("v_mul_lo_u32 v41, v40, s48"); i("v_lshrrev_b32 v41, 16, v41"); i("v_mul_u32_u24 v42, 28, v41"); i("v_sub_u32 v42, v40, v42")
        i("v_mul_u32_u24 v43, 464, v41"); i("v_lshl_add_u32 v43, v42, 4, v43"); i(f"ds_read_b128 v[{60+4*q}:{63+4*q}], v43")
        i("v_mul_u32_u24 v43, 3584, v41"); i(f"v_lshl_add_u32 v{50+q}, v42, 4, v43")
    i("s_waitcnt lgkmcnt(0)")
    for q in range(7): i(f"buffer_store_dwordx4 v[{60+4*q}:{63+4*q}], v{50+q}, s[20:23], s52 offen")
    dump(); i("s_branch K1_END")

    e("K1_SSM:")
    srd(12, 30, 512*1024); srd(16, 32, 512*1024)
    srd(72, 40, 1024)
    i("v_lshrrev_b32 v10, 5, v0"); i("s_lshl_b32 s7, s4, 4"); i("v_add_u32 v10, s7, v10")
    i("v_lshlrev_b32 v11, 10, v10"); i("v_add_u32 v11, s6, v11"); i("v_and_b32 v12, 31, v0"); i("v_lshl_add_u32 v11, v12, 5, v11")
    i("v_lshlrev_b32 v13, 5, v12")
    i("buffer_load_dwordx4 v[40:43], v11, s[8:11], 0 offen"); i("buffer_load_dwordx4 v[44:47], v11, s[8:11], 0 offen offset:16")
    i("buffer_load_dwordx4 v[48:51], v13, s[72:75], 0 offen"); i("buffer_load_dwordx4 v[52:55], v13, s[72:75], 0 offen offset:16")
    i("v_mov_b32 v14, 0"); i("s_waitcnt vmcnt(0)")
    for r in range(8):
        i(f"v_lshlrev_b32 v60, 16, v{40+r}"); i(f"v_and_b32 v61, 0xffff0000, v{40+r}")
        i(f"v_lshlrev_b32 v62, 16, v{48+r}"); i(f"v_and_b32 v63, 0xffff0000, v{48+r}")
        i("v_mul_f32 v60, v60, v62"); i("v_mul_f32 v61, v61, v63"); i("v_cvt_pk_bf16_f32 v60, v60, v61")
        i("v_lshlrev_b32 v61, 16, v60"); i("v_and_b32 v60, 0xffff0000, v60"); i("v_add_f32 v14, v14, v61"); i("v_add_f32 v14, v14, v60")
    for m in (0x041F, 0x081F, 0x101F, 0x201F, 0x401F):
        i(f"ds_swizzle_b32 v15, v14 offset:{m}"); i("s_waitcnt lgkmcnt(0)"); i("v_add_f32 v14, v14, v15")
    i("v_cvt_pk_bf16_f32 v14, v14, v14"); i("v_lshlrev_b32 v14, 16, v14")
    i("v_mul_f32 v14, 0xbfb8aa3b, v14"); i("v_exp_f32 v14, v14"); i("s_nop 0"); i("v_add_f32 v14, 1.0, v14"); i("v_rcp_f32 v14, v14"); i("s_nop 0")
    i("v_cvt_pk_bf16_f32 v14, v14, v14"); i("v_lshlrev_b32 v14, 16, v14")
    i("s_lshl_b32 s52, s3, 7"); i("v_add_u32 v10, s52, v10"); i("v_lshlrev_b32 v10, 2, v10"); i(f"v_add_u32 v10, {WS_G}, v10")
    i("buffer_store_dword v14, v10, s[20:23], 0 offen")
    i("s_lshl_b32 s7, s4, 16"); i("v_and_b32 v20, 0xffff, v7"); i("v_add_u32 v20, s7, v20"); i("v_add_u32 v21, 8192, v20")
    i("s_cmp_lt_u32 s5, 4"); i("s_cselect_b32 s12, s12, s16"); i("s_cselect_b32 s13, s13, s17")
    i("s_lshl_b32 s51, s50, 6"); i("v_add_u32 v13, s51, v3"); i("s_lshl_b32 s51, s61, 2"); i("v_add_u32 v12, s51, v4"); i("v_and_b32 v14, 7, v3"); i("v_xor_b32 v12, v12, v14")
    i("v_lshlrev_b32 v30, 7, v13"); i("v_lshl_add_u32 v30, v12, 4, v30"); i("v_add_u32 v30, 16384, v30"); i("v_add_u32 v31, 90112, v30")
    for a_ in range(64): i(f"v_accvgpr_write_b32 a{a_}, 0")
    STG = 45056
    def dmaS(ch):
        if ch > 7: return
        base = (ch % 3) * STG
        i(f"s_mov_b32 s46, {ch*128}")
        for q in range(2):
            i(f"s_add_u32 s59, s58, {base+1024*q}"); i("s_mov_b32 m0, s59"); i("s_nop 0"); i(f"buffer_load_dwordx4 v{5+q}, s[8:11], s46 offen lds")
        for q in range(2):
            i(f"s_add_u32 s59, s58, {base+16384+1024*q}"); i("s_mov_b32 m0, s59"); i("s_nop 0"); i(f"buffer_load_dwordx4 v{20+q}, s[12:15], s46 offen lds")
    XF, WF = 40, 56
    stamp(); dmaS(0); dmaS(1)
    for ch in range(8):
        st = ch % 3; o = 0 if st == 2 else st*STG
        i(f"s_waitcnt vmcnt({4 if ch < 7 else 0})"); i("s_barrier")
        for tt in range(4): i(f"ds_read_b128 v[{XF+4*tt}:{XF+4*tt+3}], v{29 if st==2 else 28} offset:{o+tt*2048}")
        for tn in range(4): i(f"ds_read_b128 v[{WF+4*tn}:{WF+4*tn+3}], v{31 if st==2 else 30} offset:{o+tn*2048}")
        dmaS(ch+2)
        for tn in range(4):
            i(f"s_waitcnt lgkmcnt({3-tn})")
            for tt in range(4):
                A = (tn*4+tt)*4
                i(f"v_mfma_f32_16x16x32_bf16 a[{A}:{A+3}], v[{XF+4*tt}:{XF+4*tt+3}], v[{WF+4*tn}:{WF+4*tn+3}], a[{A}:{A+3}]")
    i("s_barrier")
    stamp()
    i("s_lshl_b32 s51, s49, 6"); i("v_lshl_add_u32 v10, v4, 2, s51"); i("v_mul_u32_u24 v10, 528, v10")
    i("s_lshl_b32 s51, s50, 8"); i("v_lshl_add_u32 v11, v3, 2, s51"); i("v_add_u32 v10, v10, v11")
    i("s_nop 7")
    i("v_lshlrev_b32 v11, 4, v2"); i("s_and_b32 s51, s5, 3"); i("s_lshl_b32 s51, s51, 14"); i("s_add_u32 s51, s51, 67584"); i("v_add_u32 v11, s51, v11")
    i("s_cmp_eq_u32 s61, 0"); i("s_cbranch_scc1 K1S_W1")
    for q in range(16): i(f"ds_write_b128 v11, a[{4*q}:{4*q+3}] offset:{1024*q}")
    i("s_waitcnt lgkmcnt(0)"); e("K1S_W1:"); i("s_barrier")
    i("s_cmp_eq_u32 s61, 0"); i("s_cbranch_scc0 K1S_W2")
    for q in range(16): i(f"ds_read_b128 v[{60+4*q}:{63+4*q}], v11 offset:{1024*q}")
    i("s_waitcnt lgkmcnt(0)")
    for tn in range(4):
        for tt in range(4):
            for r in range(4):
                n=(tn*4+tt)*4+r
                i(f"v_accvgpr_read_b32 v12, a{n}"); i(f"v_add_f32 v12, v12, v{60+n}"); i(f"ds_write_b32 v10, v12 offset:{(16*tt+r)*528+64*tn}")
    e("K1S_W2:")
    srd(48, 26, 1024); srd(52, 28, 1024); srd(56, 34, 1024)
    i("v_and_b32 v12, 31, v0"); i("v_lshrrev_b32 v13, 5, v0")
    i("s_lshl_b32 s7, s4, 7"); i("v_lshl_add_u32 v14, v12, 2, s7")
    i("buffer_load_dword v40, v14, s[48:51], 0 offen"); i("buffer_load_dword v41, v14, s[52:55], 0 offen"); i("buffer_load_dword v42, v14, s[56:59], 0 offen")
    i("s_waitcnt vmcnt(0)")
    for u in range(2):
        ex = (lambda d, s: i(f"v_lshlrev_b32 v{d}, 16, v{s}")) if u == 0 else (lambda d, s: i(f"v_and_b32 v{d}, 0xffff0000, v{s}"))
        ex(60, 40); ex(61, 41); ex(62, 42)
        i("v_mul_f32 v62, 0x3fb8aa3b, v62"); i("v_exp_f32 v62, v62"); i("s_nop 0"); i("v_cvt_pk_bf16_f32 v62, v62, v62"); i("v_lshlrev_b32 v62, 16, v62")
        i("v_mul_f32 v63, v62, v60"); i("v_mul_f32 v64, v62, v61")
        i("v_mul_f32 v63, 0x3fb8aa3b, v63"); i("v_exp_f32 v63, v63"); i("v_mul_f32 v64, 0.15915494, v64"); i("v_cos_f32 v65, v64"); i("v_sin_f32 v66, v64"); i("s_nop 0")
        i(f"v_mul_f32 v{44+u}, v63, v65"); i(f"v_mul_f32 v{46+u}, v63, v66")
        i(f"v_subrev_f32 v65, 1.0, v{44+u}")
        i("v_mul_f32 v66, v60, v60"); i("v_fma_f32 v66, v61, v61, v66"); i("v_rcp_f32 v66, v66")
        i(f"v_mul_f32 v67, v65, v60"); i(f"v_fma_f32 v67, v{46+u}, v61, v67")
        i(f"v_mul_f32 v68, v{46+u}, v60"); i(f"v_fma_f32 v68, -v65, v61, v68")
        i(f"v_mul_f32 v{48+u}, v67, v66"); i(f"v_mul_f32 v{50+u}, v68, v66")
    i("s_waitcnt lgkmcnt(0)"); i("s_barrier")
    i("v_mul_u32_u24 v15, 4224, v13"); i("v_lshl_add_u32 v15, v12, 3, v15")
    for k in range(8):
        i(f"ds_read_b64 v[{100+4*k}:{101+4*k}], v15 offset:{k*528}"); i(f"ds_read_b64 v[{102+4*k}:{103+4*k}], v15 offset:{k*528+256}")
    i("s_waitcnt lgkmcnt(0)")
    def cmad(dr, di, ar, ai, br, bi, cr, ci):
        i(f"v_fma_f32 v70, v{ar}, v{br}, v{cr}"); i(f"v_fma_f32 v71, v{ar}, v{bi}, v{ci}")
        i(f"v_fma_f32 v69, -v{ai}, v{bi}, v70"); i(f"v_fma_f32 v{di}, v{ai}, v{br}, v71"); i(f"v_mov_b32 v{dr}, v69")
    for k in range(1, 8):
        for u in range(2):
            cmad(100+4*k+u, 102+4*k+u, 44+u, 46+u, 96+4*k+u, 98+4*k+u, 100+4*k+u, 102+4*k+u)
    for u in range(2):
        i(f"v_mov_b32 v{52+u}, v{44+u}"); i(f"v_mov_b32 v{54+u}, v{46+u}")
        for _ in range(3):
            i(f"v_mul_f32 v70, v{52+u}, v{52+u}"); i(f"v_mul_f32 v71, v{52+u}, v{54+u}")
            i(f"v_fma_f32 v{52+u}, -v{54+u}, v{54+u}, v70"); i(f"v_add_f32 v{54+u}, v71, v71")
    SF, CS, PW, CIN = 0, 8192, 16384, 24576
    i("v_lshlrev_b32 v16, 4, v0"); i("v_add_u32 v16, 67584, v16"); i(f"ds_write_b128 v16, v[128:131] offset:{SF}")
    i("s_waitcnt lgkmcnt(0)"); i("s_barrier")
    i("s_cmp_lg_u32 s5, 0"); i("s_cbranch_scc1 K1_WAITC")
    i("v_lshlrev_b32 v17, 4, v12"); i("v_add_u32 v97, 67584, v17")
    for r in range(4): i(f"v_mov_b32 v{72+r}, 0")
    i("v_mov_b32 v76, 1.0"); i("v_mov_b32 v77, 1.0"); i("v_mov_b32 v78, 0"); i("v_mov_b32 v79, 0")
    for s in range(16):
        i(f"ds_read_b128 v[80:83], v97 offset:{SF+512*s}")
        i(f"ds_write_b128 v97, v[72:75] offset:{CS+512*s}"); i(f"ds_write_b128 v97, v[76:79] offset:{PW+512*s}")
        i("s_waitcnt lgkmcnt(0)")
        for u in range(2):
            cmad(72+u, 74+u, 52+u, 54+u, 72+u, 74+u, 80+u, 82+u)
            i(f"v_mul_f32 v84, v{76+u}, v{52+u}"); i(f"v_mul_f32 v85, v{76+u}, v{54+u}")
            i(f"v_fma_f32 v{76+u}, -v{78+u}, v{54+u}, v84"); i(f"v_fma_f32 v{78+u}, v{78+u}, v{52+u}, v85")
    i("s_lshl_b32 s7, s3, 3"); i("s_add_u32 s7, s7, s4"); i("s_lshl_b32 s7, s7, 9"); i(f"s_add_u32 s7, s7, {WS_FIN}")
    i("v_add_u32 v18, s7, v17")
    i("buffer_store_dwordx4 v[72:75], v18, s[20:23], 0 offen sc1")
    i("s_waitcnt vmcnt(0)")
    srd(48, 42, 256)
    i("s_lshl_b32 s7, 1, s3"); i("v_mov_b32 v19, s7"); i("s_lshl_b32 s52, s4, 2"); i("v_mov_b32 v86, s52")
    i("v_cmp_eq_u32 vcc, 0, v2"); i("s_and_saveexec_b64 s[60:61], vcc")
    i("buffer_atomic_or v19, v86, s[48:51], 0 offen sc1")
    i("s_mov_b64 exec, s[60:61]")
    i("s_sub_u32 s53, s7, 1")
    e("K1_POLL:")
    i("buffer_load_dword v87, v86, s[48:51], 0 offen sc1"); i("s_waitcnt vmcnt(0)")
    i("v_readfirstlane_b32 s54, v87"); i("s_and_b32 s54, s54, s53"); i("s_cmp_eq_u32 s54, s53"); i("s_cbranch_scc1 K1_GOT")
    i("s_sleep 2"); i("s_branch K1_POLL")
    e("K1_GOT:")
    i(f"ds_write_b128 v97, v[76:79] offset:{CIN}"); i("s_waitcnt lgkmcnt(0)")
    e("K1_WAITC:")
    i("s_barrier"); stamp()
    i("v_lshlrev_b32 v17, 4, v12"); i("v_add_u32 v97, 67584, v17")
    FL = 28672
    for rr in range(2):
        i(f"s_add_u32 s54, s5, {8*rr}"); i("s_cmp_ge_u32 s54, s3"); i(f"s_cbranch_scc1 K1_SK{rr}")
        i("s_lshl_b32 s7, s54, 3"); i("s_add_u32 s7, s7, s4"); i("s_lshl_b32 s7, s7, 9"); i(f"s_add_u32 s7, s7, {WS_FIN}"); i("v_add_u32 v18, s7, v17")
        i("buffer_load_dwordx4 v[80:83], v18, s[20:23], 0 offen sc1"); i("s_lshl_b32 s7, s54, 9"); i("v_add_u32 v19, s7, v97")
        i("s_waitcnt vmcnt(0)"); i(f"ds_write_b128 v19, v[80:83] offset:{FL}"); i("s_waitcnt lgkmcnt(0)")
        e(f"K1_SK{rr}:")
    i("s_barrier")
    i(f"ds_read_b128 v[76:79], v97 offset:{CIN}")
    for r in range(4): i(f"v_mov_b32 v{80+r}, 0")
    i("s_mov_b32 s55, 0"); i("v_mov_b32 v19, v97"); i("s_waitcnt lgkmcnt(0)")
    e("K1_HORN:")
    i("s_cmp_ge_u32 s55, s3"); i("s_cbranch_scc1 K1_HDONE")
    i(f"ds_read_b128 v[84:87], v19 offset:{FL}"); i("v_add_u32 v19, 512, v19"); i("s_waitcnt lgkmcnt(0)")
    for u in range(2): cmad(80+u, 82+u, 76+u, 78+u, 80+u, 82+u, 84+u, 86+u)
    i("s_add_u32 s55, s55, 1"); i("s_branch K1_HORN")
    e("K1_HDONE:")
    i(f"ds_read_b128 v[72:75], v16 offset:{CS}"); i(f"ds_read_b128 v[76:79], v16 offset:{PW}")
    i("s_waitcnt lgkmcnt(0)")
    for u in range(2): cmad(72+u, 74+u, 76+u, 78+u, 80+u, 82+u, 72+u, 74+u)
    i("s_lshl_b32 s7, s3, 7"); i("v_lshl_add_u32 v18, v13, 3, s7"); i("v_lshlrev_b32 v18, 11, v18")
    i("s_lshl_b32 s7, s4, 7"); i(f"s_add_u32 s7, s7, {WS_H}"); i("v_lshl_add_u32 v19, v12, 2, s7"); i("v_add_u32 v18, v18, v19")
    i("v_add_u32 v19, 4096, v18")
    for k in range(8):
        for u in range(2):
            i(f"v_mul_f32 v84, v{44+u}, v{72+u}"); i(f"v_mul_f32 v85, v{44+u}, v{74+u}")
            i(f"v_fma_f32 v84, -v{46+u}, v{74+u}, v84"); i(f"v_fma_f32 v{74+u}, v{46+u}, v{72+u}, v85"); i(f"v_mov_b32 v{72+u}, v84")
            i(f"v_add_f32 v86, v{100+4*k+u}, v{72+u}"); i(f"v_add_f32 v87, v{102+4*k+u}, v{74+u}")
            i(f"v_mul_f32 v88, v{48+u}, v86"); i(f"v_fma_f32 v{90+u}, -v{50+u}, v87, v88")
            i(f"v_mul_f32 v88, v{48+u}, v87"); i(f"v_fma_f32 v88, v{50+u}, v86, v88"); i(f"v_sub_f32 v{92+u}, 0, v88")
        i("v_cvt_pk_bf16_f32 v94, v90, v91"); i("v_cvt_pk_bf16_f32 v95, v92, v93")
        i(f"v_add_u32 v89, {k*2048}, v18")
        i("buffer_store_dword v94, v89, s[20:23], 0 offen"); i("buffer_store_dword v95, v89, s[20:23], 0 offen offset:1024")
    dump()
    e("K1_END:")
    i("s_endpgm")
    G['kdesc']("k1_kernel", 256, 136)
```
